```python
import torch

def _softmax(x, axis=-1):
    return torch.softmax(x, dim=axis)
def _gelu(x):
    return torch.nn.functional.gelu(x, approximate="tanh")
def _silu(x):
    return torch.nn.functional.silu(x)
def _sigmoid(x):
    return torch.sigmoid(x)
def _layernorm(x, axis=-1, eps=1e-5):
    m = x.mean(dim=axis, keepdim=True)
    v = x.var(dim=axis, keepdim=True, unbiased=False)
    return (x - m) / torch.sqrt(v + eps)
def _scatter_add(tgt, idx, src, axis=0):
    return tgt.clone().index_add_(axis, idx, src)
def _segment_sum(src, seg, n):
    out = torch.zeros((n,) + src.shape[1:], dtype=src.dtype)
    return out.index_add_(0, seg, src)
def _pad(x, pw):
    flat = tuple(v for pair in reversed(pw) for v in pair)
    return torch.nn.functional.pad(x, flat)

kernel_name = 'gated_mix__linear_attn_block__mixer_token_mlp__prompt'

def setup_inputs():

    _w = (lambda a: (lambda t: t.to(torch.bfloat16) if t.is_floating_point() else t)(torch.as_tensor(a)))
    def _A_setup():
        B, S, D = 1, 2048, 512
        return {
            "x": _w((lambda *s: torch.randn(*s, dtype=torch.bfloat16) * 0.05)(B, S, D)),
            "wqkv": _w((lambda *s: torch.randn(*s, dtype=torch.bfloat16) * 0.4)(D, 3 * D)),
            "wo": _w((lambda *s: torch.randn(*s, dtype=torch.bfloat16) * 0.05)(D, D)),
        }
    _A_in = _A_setup()

    def _B_setup():
        B, S, D, F = 1, 2048, 512, 1792
        return {
            "x": _w((lambda *s: torch.randn(*s, dtype=torch.bfloat16) * 0.05)(B, S, D)),
            "w1": _w((lambda *s: torch.randn(*s, dtype=torch.bfloat16) * 0.4)(S, F) * (S ** -0.5)),
            "b1": _w((lambda *s: torch.randn(*s, dtype=torch.bfloat16) * 3.2)(F) * 0.02),
            "w2": _w((lambda *s: torch.randn(*s, dtype=torch.bfloat16) * 0.05)(F, S) * (F ** -0.5)),
            "b2": _w((lambda *s: torch.randn(*s, dtype=torch.bfloat16) * 0.1)(S) * 0.02),
        }
    _B_in = _B_setup()

    return {
        "A_x": _A_in["x"],
        "A_wqkv": _A_in["wqkv"],
        "A_wo": _A_in["wo"],
        "B_x": _B_in["x"],
        "B_w1": _B_in["w1"],
        "B_b1": _B_in["b1"],
        "B_w2": _B_in["w2"],
        "B_b2": _B_in["b2"],
        "gate_w": _w((lambda *s: torch.randn(*s, dtype=torch.bfloat16) * 0.05)(512) * 16.0),
    }

def reference(A_x, A_wqkv, A_wo, B_x, B_w1, B_b1, B_w2, B_b2, gate_w):
    def _A_ref(x, wqkv, wo):
        B, S, D = x.shape
        H = 32; Dh = D // H
        qkv = (lambda x, *d: x.permute(*d))((x @ wqkv).reshape(B, S, 3, H, Dh), 2, 0, 3, 1, 4)
        q, k, v = qkv[0], qkv[1], qkv[2]
        phi = lambda t: torch.where(t > 0, t + 1, torch.exp(t)) + 1e-6
        pq, pk = phi(q), phi(k)
        kv = torch.einsum("bhsd,bhse->bhde", pk, v)
        z = torch.einsum("bhsd->bhd", pk)
        num = torch.einsum("bhqd,bhde->bhqe", pq, kv)
        den = torch.einsum("bhqd,bhd->bhq", pq, z)[..., None] + 1e-6
        o = num / den
        return (lambda x, *d: x.permute(*d))(o, 0, 2, 1, 3).reshape(B, S, D) @ wo

    def _B_ref(x, w1, b1, w2, b2):
        B, S, D = x.shape
        h = _layernorm(x, axis=-1)
        u = torch.einsum("bsd,sf->bdf", h, w1) + b1
        u = _gelu(u)
        y = torch.einsum("bdf,fs->bds", u, w2) + b2
        return (lambda x, *d: x.permute(*d))(y, 0, 2, 1)

    x = A_x
    g = _sigmoid((x * gate_w).sum(-1, keepdims=True))
    a = _A_ref(x, A_wqkv, A_wo)
    b = _B_ref(x, B_w1, B_b1, B_w2, B_b2)
    return g * a + (1 - g) * b
```

```python
import re

def _regs(tok):
    tok = tok.strip()
    neg = tok.lstrip('-')
    m = re.fullmatch(r'abs\((.*)\)|\|(.*)\|', neg)
    if m: neg = m.group(1) or m.group(2)
    m = re.fullmatch(r'([vsa])(\d+)', neg)
    if m: return {(m.group(1), int(m.group(2)))}
    m = re.fullmatch(r'([vsa])\[(\d+):(\d+)\]', neg)
    if m: return {(m.group(1), i) for i in range(int(m.group(2)), int(m.group(3)) + 1)}
    if neg in ('vcc', 'vcc_lo', 'vcc_hi'): return {('x', 'vcc')}
    if neg in ('exec', 'exec_lo', 'exec_hi'): return {('x', 'exec')}
    if neg == 'm0': return {('x', 'm0')}
    return set()

TRANS = ('v_exp_f32', 'v_log_f32', 'v_rcp_f32', 'v_rsq_f32', 'v_sqrt_f32', 'v_sin_f32', 'v_cos_f32')

class Ins:
    def __init__(self, text):
        self.text = text
        t = text.split(';')[0].strip()
        self.op = t.split()[0] if t else ''
        rest = t[len(self.op):].strip()
        ops, depth, cur = [], 0, ''
        for ch in rest:
            if ch in '[(': depth += 1
            if ch in '])': depth -= 1
            if ch == ',' and depth == 0: ops.append(cur); cur = ''
            else: cur += ch
        if cur.strip(): ops.append(cur)
        mods = ''
        if ops:
            parts = ops[-1].strip().split(None, 1)
            ops[-1] = parts[0]
            mods = parts[1] if len(parts) > 1 else ''
        self.ops = [o.strip() for o in ops]
        self.mods = mods
        op = self.op
        self.is_label = t.endswith(':')
        self.is_mfma = op.startswith('v_mfma')
        self.is_valu = op.startswith('v_') and not self.is_mfma
        self.is_salu = op.startswith('s_')
        self.is_vmem = op.startswith(('buffer_', 'global_'))
        self.is_ds = op.startswith('ds_')
        self.is_trans = any(op.startswith(x) for x in TRANS)
        self.is_dpp = '_dpp' in op
        self.is_dot = op.startswith('v_dot')
        self.is_permlane = op.startswith('v_permlane')
        self.is_readlane = op.startswith(('v_readlane', 'v_readfirstlane'))
        self.is_lds_dma = self.is_vmem and re.search(r'\blds\b', mods) is not None
        R = [_regs(o) for o in self.ops]
        self.dst, self.src = set(), set()
        self.srcC = set(); self.srcAB = set(); self.store_data = set()
        if self.is_label or not op: return
        if self.is_mfma:
            self.dst = R[0]; self.srcAB = R[1] | R[2]; self.srcC = R[3]; self.src = self.srcAB | self.srcC
            self.passes = 8 if '32x32x16' in op else 4
        elif self.is_valu:
            if op.startswith('v_cmp'):
                self.dst = R[0]; self.src = set().union(*R[1:])
                if op.startswith('v_cmpx'): self.dst |= {('x', 'exec')}
            elif self.is_permlane:
                self.dst = R[0] | R[1]; self.src = R[0] | R[1]
            elif op.startswith(('v_add_co', 'v_sub_co', 'v_addc_co', 'v_subb_co')):
                self.dst = R[0] | R[1]; self.src = set().union(*R[2:])
            else:
                self.dst = R[0]; self.src = set().union(*R[1:]) if len(R) > 1 else set()
                if op.startswith(('v_fmac', 'v_dot2c', 'v_writelane')) or self.is_dpp: self.src |= R[0]
        elif self.is_vmem:
            if op.startswith('buffer_load'):
                if self.is_lds_dma: self.src = set().union(*R) | {('x', 'm0')}
                else: self.dst = R[0]; self.src = set().union(*R[1:])
            elif op.startswith('buffer_store') or op.startswith('buffer_atomic'):
                self.src = set().union(*R); self.store_data = R[0]
                if op.startswith('buffer_atomic') and 'sc0' in mods: self.dst = R[0]
            elif op.startswith('global_load'):
                self.dst = R[0]; self.src = set().union(*R[1:])
            elif op.startswith('global_store'):
                self.src = set().union(*R); self.store_data = R[1]
            elif op.startswith('global_atomic'):
                if 'sc0' in mods: self.dst = R[0]; self.src = set().union(*R[1:])
                else: self.src = set().union(*R)
        elif self.is_ds:
            if op.startswith(('ds_read', 'ds_bpermute', 'ds_swizzle', 'ds_permute')):
                self.dst = R[0]; self.src = set().union(*R[1:])
            else:
                self.src = set().union(*R)
        elif self.is_salu:
            if op.startswith(('s_cmp', 's_cbranch', 's_branch', 's_waitcnt', 's_barrier', 's_nop', 's_endpgm', 's_sleep', 's_setprio')):
                self.src = set().union(*R) if R else set()
            else:
                self.dst = R[0] if R else set(); self.src = set().union(*R[1:]) if len(R) > 1 else set()
                if 'saveexec' in op: self.dst |= {('x', 'exec')}
    def states(self):
        if self.is_label or not self.op: return 0
        if self.op == 's_nop': return int(self.ops[0], 0) + 1
        return 1

def need(p, c):
    n = 0
    def vg(s): return {r for r in s if r[0] in 'va'}
    def sg(s): return {r for r in s if r[0] == 's' or r == ('x', 'vcc')}
    if p.is_mfma:
        P = p.passes
        D = p.dst
        tbl = {4: 8, 8: 12}[P]
        if c.is_mfma:
            if D & c.srcAB: n = max(n, tbl)
            if D & c.srcC:
                if not (c.srcC == D and c.passes == P): n = max(n, {4: 6, 8: 10}[P])
            elif D & c.dst: n = max(n, tbl)
        elif c.is_valu:
            if D & (c.src | c.dst): n = max(n, tbl)
            if p.srcC & c.dst: n = max(n, {4: 3, 8: 7}[P])
        elif c.is_vmem or c.is_ds:
            if D & (c.src | c.dst): n = max(n, tbl)
    if p.is_valu:
        w = vg(p.dst)
        if c.is_mfma and (w & c.src): n = max(n, 2)
        if c.is_valu and c.is_dpp and (w & c.src): n = max(n, 2)
        if c.is_permlane and (w & c.src): n = max(n, 2)
        if c.is_readlane and (w & c.src): n = max(n, 1)
        if p.is_trans and c.is_valu and not c.is_trans and (w & c.src): n = max(n, 1)
        if p.is_trans and (c.is_mfma) and (w & c.src): n = max(n, 2)
        if p.is_dot and (c.is_valu or c.is_mfma or c.is_vmem or c.is_ds) and (w & (c.src | c.dst)):
            if not (c.op == p.op and len(c.ops) == 4 and _regs(c.ops[3]) == w and not (w & (_regs(c.ops[1]) | _regs(c.ops[2])))): n = max(n, 3)
        if 'op_sel' in p.mods or 'sdwa' in p.op:
            if c.is_valu and (w & (c.src | c.dst)): n = max(n, 1)
        ws = sg(p.dst)
        if ws:
            if c.is_vmem and (ws & c.src): n = max(n, 5)
            if c.is_valu and (ws & c.src): n = max(n, 4 if c.op.startswith(('v_readlane', 'v_writelane')) else 2)
            if c.is_valu and ('x', 'vcc') in ws and c.op.startswith(('v_cndmask', 'v_addc', 'v_subb')): n = max(n, 2)
            if c.is_salu and (ws & c.src): n = max(n, 1)
        if ('x', 'exec') in p.dst:
            if c.is_mfma or c.is_readlane or c.is_permlane: n = max(n, 4)
            if c.is_dpp: n = max(n, 5)
    if p.is_salu and ('x', 'm0') in p.dst and c.is_lds_dma: n = max(n, 1)
    if p.is_vmem and p.store_data and len(p.store_data) >= 3:
        if (c.is_valu or c.is_mfma) and (p.store_data & c.dst): n = max(n, 2)
        elif p.store_data & c.dst: n = max(n, 1)
    return n

class Asm:
    def __init__(self):
        self.lines = []
        self.vm = []
        self.lg = []
    def raw(self, text):
        i = Ins(''); i.text = text; self.lines.append(i)
    def e(self, text, tag=None):
        ins = Ins(text)
        dist = 0; pad = 0
        for p in reversed(self.lines):
            if dist >= 20: break
            if p.op:
                k = need(p, ins) - dist
                pad = max(pad, k)
            dist += p.states()
        while pad > 0:
            k = min(pad, 16)
            self.lines.append(Ins('s_nop %d' % (k - 1)))
            pad -= k
        self.lines.append(ins)
        if ins.is_vmem and not ins.op.startswith(('buffer_wbl2', 'buffer_inv')): self.vm.append(tag)
        if ins.is_ds: self.lg.append(tag)
        return ins
    def label(self, name):
        self.lines.append(Ins(name + ':'))
    def _cnt(self, q, tags):
        idx = [i for i, t in enumerate(q) if t in tags]
        if not idx: return None
        return len(q) - 1 - idx[-1]
    def wait(self, vm=None, lg=None):
        parts = []
        if vm is not None:
            n = 0 if vm == 'all' else self._cnt(self.vm, vm if isinstance(vm, (tuple, list, set)) else (vm,))
            if n is not None and (self.vm or vm == 'all'):
                n = min(n, 63)
                parts.append('vmcnt(%d)' % n); self.vm = self.vm[len(self.vm) - n:] if n else []
        if lg is not None:
            n = 0 if lg == 'all' else self._cnt(self.lg, lg if isinstance(lg, (tuple, list, set)) else (lg,))
            if n is not None and (self.lg or lg == 'all'):
                n = min(n, 15)
                parts.append('lgkmcnt(%d)' % n); self.lg = self.lg[len(self.lg) - n:] if n else []
        if parts: self.e('s_waitcnt ' + ' '.join(parts))
    def reset(self):
        self.vm = []; self.lg = []
    def text(self):
        out = []
        for i in self.lines:
            out.append(i.text if (i.is_label or not i.op) else '    ' + i.text)
        return '\n'.join(out) + '\n'

def vr(b, n=1): return 'v%d' % b if n == 1 else 'v[%d:%d]' % (b, b + n - 1)
def sr(b, n=1): return 's%d' % b if n == 1 else 's[%d:%d]' % (b, b + n - 1)
def f32(x):
    import struct
    return '0x%08x' % struct.unpack('<I', struct.pack('<f', x))[0]
```

```python
import sys, math
from asmlib import *

NAME = 'gated_mix__linear_attn_block__mixer_token_mlp__prompt'
WS_H, WS_U, WS_PQ, WS_O, WS_KV, WS_Z, WS_G = 0x000000, 0x200000, 0x400000, 0x600000, 0x800000, 0xA00000, 0xA40000
WS_SIZE = 0xB00000
LOG2E = math.log2(math.e)
A_X, A_WQKV, A_WO, A_BX, A_W1, A_B1, A_W2, A_B2, A_GW, A_OUT, A_DBG, A_WS = [8 * i for i in range(12)]

def srd(a, d, lo, hi, size):
    a.e('s_mov_b32 s%d, s%d' % (d, lo)); a.e('s_mov_b32 s%d, s%d' % (d + 1, hi))
    a.e('s_mov_b32 s%d, 0x%x' % (d + 2, size)); a.e('s_mov_b32 s%d, 0x20000' % (d + 3))

def kernel_head(a, name):
    a.raw('.globl %s\n.p2align 8\n.type %s,@function' % (name, name))
    a.label(name); a.reset()

def tr_lane_addr(a, dst, lane, t0, t1, hf_rows, ch_s, rowpitch_hf=None):
    hf_bytes = rowpitch_hf if rowpitch_hf is not None else hf_rows * 128
    a.e('v_bfe_u32 v%d, v%d, 2, 2' % (t0, lane))
    a.e('v_lshlrev_b32 v%d, 7, v%d' % (dst, t0))
    a.e('v_lshrrev_b32 v%d, 1, v%d' % (t0, t0))
    a.e('v_xor_b32 v%d, s%d, v%d' % (t0, ch_s, t0))
    a.e('v_lshl_add_u32 v%d, v%d, 6, v%d' % (dst, t0, dst))
    a.e('v_bfe_u32 v%d, v%d, 4, 1' % (t0, lane))
    a.e('v_lshl_add_u32 v%d, v%d, 5, v%d' % (dst, t0, dst))
    a.e('v_and_b32 v%d, 3, v%d' % (t0, lane))
    a.e('v_lshl_add_u32 v%d, v%d, 3, v%d' % (dst, t0, dst))
    a.e('v_lshrrev_b32 v%d, 5, v%d' % (t0, lane))
    a.e('v_mul_u32_u24 v%d, %d, v%d' % (t0, hf_bytes, t0))
    a.e('v_add_u32 v%d, v%d, v%d' % (dst, dst, t0))

def t_dma_voff(a, dst, lane, t0, wave_s, pitch, tmp_s):
    a.e('v_lshrrev_b32 v%d, 3, v%d' % (dst, lane))
    a.e('s_lshl_b32 s%d, s%d, 4' % (tmp_s, wave_s))
    a.e('v_add_u32 v%d, s%d, v%d' % (dst, tmp_s, dst))
    a.e('v_mul_u32_u24 v%d, %d, v%d' % (dst, pitch, dst))
    a.e('v_bfe_u32 v%d, v%d, 4, 1' % (t0, lane))
    a.e('v_lshlrev_b32 v%d, 2, v%d' % (t0, t0))
    a.e('v_xor_b32 v%d, v%d, v%d' % (t0, lane, t0))
    a.e('v_and_b32 v%d, 7, v%d' % (t0, t0))
    a.e('v_lshl_add_u32 v%d, v%d, 4, v%d' % (dst, t0, dst))

def interleave(a, main, fill):
    n = len(main); k = len(fill); j = 0
    for i, m in enumerate(main):
        m()
        upto = (k * (i + 1)) // n
        while j < upto: fill[j](); j += 1
    while j < k: fill[j](); j += 1

def dpp_reduce(a, regs):
    for pat in ('row_shr:1 row_mask:0xf', 'row_shr:2 row_mask:0xf', 'row_shr:4 row_mask:0xf', 'row_shr:8 row_mask:0xf',
                'row_bcast:15 row_mask:0xa', 'row_bcast:31 row_mask:0xc'):
        for r in regs:
            a.e('v_add_f32_dpp v%d, v%d, v%d %s bank_mask:0xf' % (r, r, r, pat))

def k1(a):
    kernel_head(a, 'k1_kernel')
    a.e('s_cmp_ge_u32 s2, 256'); a.e('s_cbranch_scc1 k1_end')
    a.e('s_load_dwordx4 s[4:7], s[0:1], %d' % A_X)
    a.e('s_load_dwordx2 s[8:9], s[0:1], %d' % A_GW)
    a.e('s_load_dwordx2 s[10:11], s[0:1], %d' % A_WS)
    LANE, T0, T1 = 1, 2, 3
    a.e('v_and_b32 v1, 63, v0'); a.e('v_lshrrev_b32 v2, 6, v0')
    a.e('v_readfirstlane_b32 s12, v2')
    W = 12
    a.e('s_and_b32 s13, s2, 7'); a.e('s_lshr_b32 s14, s2, 3')
    a.e('s_lshr_b32 s15, s13, 1'); a.e('s_lshl_b32 s15, s15, 3'); a.e('s_lshr_b32 s16, s14, 2'); a.e('s_add_u32 s15, s15, s16')
    a.e('s_and_b32 s16, s13, 1'); a.e('s_lshl_b32 s16, s16, 2'); a.e('s_and_b32 s17, s14, 3'); a.e('s_add_u32 s16, s16, s17')
    RT, HG = 15, 16
    a.e('s_and_b32 s17, s12, 1'); a.e('s_lshr_b32 s18, s12, 1')
    RH, HP = 17, 18
    a.e('s_lshl_b32 s19, s15, 6'); a.e('s_lshl_b32 s20, s16, 3'); a.e('s_add_u32 s19, s19, s20'); a.e('s_lshl_b32 s20, s12, 1'); a.e('s_add_u32 s19, s19, s20')
    S0 = 19
    a.e('s_lshl_b32 s20, s19, 10')
    a.e('v_lshlrev_b32 v4, 4, v1')
    XO0, XO1, WO = 5, 6, 7
    a.e('v_lshrrev_b32 v5, 3, v1'); a.e('s_lshl_b32 s21, s12, 4'); a.e('v_add_u32 v5, s21, v5'); a.e('v_lshlrev_b32 v5, 10, v5')
    a.e('v_lshrrev_b32 v2, 4, v1'); a.e('v_xor_b32 v2, v1, v2'); a.e('v_and_b32 v2, 7, v2')
    a.e('v_lshl_add_u32 v5, v2, 4, v5')
    a.e('v_xor_b32 v6, 64, v5'); a.e('v_add_u32 v6, %d, v6' % (8192 - 1024))
    t_dma_voff(a, WO, LANE, T0, W, 3072, 21)
    a.e('s_waitcnt lgkmcnt(0)')
    SX, SW, SG, SS = 24, 28, 32, 36
    srd(a, SX, 4, 5, 2048 * 1024); srd(a, SW, 6, 7, 512 * 3072); srd(a, SG, 8, 9, 1024); srd(a, SS, 10, 11, WS_SIZE)
    XR = 200
    a.e('buffer_load_dwordx4 v[200:203], v4, s[24:27], s20 offen', 'ln')
    a.e('buffer_load_dwordx4 v[204:207], v4, s[24:27], s20 offen offset:1024', 'ln')
    a.e('buffer_load_dwordx4 v[208:211], v4, s[32:35], 0 offen', 'ln')
    a.e('s_lshl_b32 s40, s15, 16')
    a.e('s_lshl_b32 s41, s16, 7')
    a.e('s_add_u32 s42, s41, %d' % (8 * 3072))
    a.e('s_lshl_b32 s43, s12, 11')
    a.e('s_mul_i32 s44, s12, 6144')
    R, NS, SLOT = 4, 8, 32768
    def dma(st):
        sb = (st % R) * SLOT; tg = 'st%d' % st
        ops = []
        def x01():
            a.e('s_add_u32 m0, s43, %d' % sb)
            a.e('buffer_load_dwordx4 v%d, s[24:27], s40 offen lds' % XO0, tg)
        ops.append(x01)
        def x1():
            a.e('buffer_load_dwordx4 v%d, s[24:27], s40 offen offset:1024 lds' % XO1, tg)
            a.e('s_add_u32 s40, s40, 128')
        ops.append(x1)
        for t in range(2):
            for g in range(3):
                def f(t=t, g=g):
                    if g == 0: a.e('s_add_u32 m0, s44, %d' % (sb + 8192 + t * 3072))
                    a.e('buffer_load_dwordx4 v%d, s[28:31], s%d offen offset:%d lds' % (WO, 41 + t, g * 1024), tg)
                    if g == 2: a.e('s_add_u32 s%d, s%d, %d' % (41 + t, 41 + t, 64 * 3072))
                ops.append(f)
        return ops
    for st in range(R):
        for f in dma(st): f()
    XA = 8
    WA = 16
    a.e('v_and_b32 v2, 31, v1'); a.e('s_lshl_b32 s21, s17, 5'); a.e('v_add_u32 v2, s21, v2')
    a.e('v_bfe_u32 v3, v2, 1, 3')
    a.e('v_lshlrev_b32 v2, 7, v2')
    a.e('v_lshrrev_b32 v18, 5, v1')
    a.e('v_xor_b32 v3, v3, v18')
    for ks in range(4):
        a.e('v_xor_b32 v18, %d, v3' % (2 * ks))
        a.e('v_lshl_add_u32 v%d, v18, 4, v2' % (XA + ks))
        a.e('v_add_u32 v%d, 0x10000, v%d' % (XA + 4 + ks, XA + ks))
    tr_lane_addr(a, WA, LANE, T0, T1, 0, HP, rowpitch_hf=3072)
    a.e('v_add_u32 v%d, 0x10000, v%d' % (WA + 1, WA))
    AQ, AK, AV = 20, 36, 52
    for r in range(48): a.e('v_mov_b32 v%d, 0' % (AQ + r))
    a.wait(vm='ln')
    F = 212
    a.e('s_mov_b32 s45, 0x3f803f80')
    for r in range(4): a.e('v_mov_b32 v%d, 0' % (228 + r))
    for i in range(4):
        a.e('v_dot2_f32_bf16 v228, v%d, s45, v228' % (200 + i))
        a.e('v_dot2_f32_bf16 v229, v%d, s45, v229' % (204 + i))
        a.e('v_dot2_f32_bf16 v230, v%d, v%d, v230' % (200 + i, 208 + i))
        a.e('v_dot2_f32_bf16 v231, v%d, v%d, v231' % (204 + i, 208 + i))
    for i in range(8):
        a.e('v_lshlrev_b32 v%d, 16, v%d' % (F + 2 * i, 200 + i))
        a.e('v_and_b32 v%d, 0xffff0000, v%d' % (F + 2 * i + 1, 200 + i))
    dpp_reduce(a, [228, 229, 230, 231])
    a.e('v_mul_f32 v228, %s, v228' % f32(1 / 512)); a.e('v_mul_f32 v229, %s, v229' % f32(1 / 512))
    a.e('v_mul_f32 v230, %s, v230' % f32(-LOG2E)); a.e('v_mul_f32 v231, %s, v231' % f32(-LOG2E))
    a.e('v_readlane_b32 s46, v228, 63'); a.e('v_readlane_b32 s47, v229, 63')
    a.e('v_exp_f32 v230, v230'); a.e('v_exp_f32 v231, v231')
    for i in range(8): a.e('v_subrev_f32 v%d, s46, v%d' % (F + i, F + i))
    for i in range(8): a.e('v_subrev_f32 v%d, s47, v%d' % (F + 8 + i, F + 8 + i))
    a.e('v_add_f32 v230, 1.0, v230'); a.e('v_add_f32 v231, 1.0, v231')
    a.e('v_mul_f32 v228, v%d, v%d' % (F, F)); a.e('v_mul_f32 v229, v%d, v%d' % (F + 8, F + 8))
    for i in range(1, 8):
        a.e('v_fmac_f32 v228, v%d, v%d' % (F + i, F + i)); a.e('v_fmac_f32 v229, v%d, v%d' % (F + 8 + i, F + 8 + i))
    a.e('v_rcp_f32 v232, v230'); a.e('v_rcp_f32 v234, v231')
    dpp_reduce(a, [228, 229])
    a.e('v_sub_f32 v233, 1.0, v232'); a.e('v_sub_f32 v235, 1.0, v234')
    a.e('v_mov_b32 v230, %s' % f32(1e-5))
    a.e('v_fmac_f32 v230, %s, v228' % f32(1 / 512))
    a.e('v_mov_b32 v231, %s' % f32(1e-5))
    a.e('v_fmac_f32 v231, %s, v229' % f32(1 / 512))
    a.e('v_rsq_f32 v230, v230'); a.e('v_rsq_f32 v231, v231')
    a.e('s_nop 0')
    a.e('v_readlane_b32 s46, v230, 63'); a.e('v_readlane_b32 s47, v231, 63')
    for i in range(8): a.e('v_mul_f32 v%d, s46, v%d' % (F + i, F + i))
    for i in range(8): a.e('v_mul_f32 v%d, s47, v%d' % (F + 8 + i, F + 8 + i))
    for i in range(8): a.e('v_cvt_pk_bf16_f32 v%d, v%d, v%d' % (200 + i, F + 2 * i, F + 2 * i + 1))
    a.e('v_lshrrev_b32 v2, 3, v1'); a.e('v_lshlrev_b32 v2, 18, v2')
    a.e('s_lshl_b32 s21, s17, 2'); a.e('v_xor_b32 v3, s21, v1'); a.e('v_and_b32 v3, 7, v3'); a.e('v_lshl_add_u32 v2, v3, 4, v2')
    a.e('s_lshl_b32 s21, s19, 7'); a.e('s_add_u32 s21, s21, 0x%x' % WS_H)
    a.e('buffer_store_dwordx4 v[200:203], v2, s[36:39], s21 offen', 'sth')
    a.e('buffer_store_dwordx4 v[204:207], v2, s[36:39], s21 offen offset:128', 'sth')
    a.e('s_lshl_b32 s21, s19, 3'); a.e('s_add_u32 s21, s21, 0x%x' % WS_G)
    a.e('v_mov_b32 v3, 0')
    a.e('s_mov_b32 exec_lo, 0'); a.e('s_mov_b32 exec_hi, 0x80000000')
    a.e('buffer_store_dwordx4 v[232:235], v3, s[36:39], s21 offen', 'sth')
    a.e('s_mov_b64 exec, -1')
    FR = 68
    def reads(st):
        sl = st % R; hi = sl >= 2; so = (sl & 1) * SLOT; fb = FR + (st & 1) * 64; tg = 'rd%d' % st
        ops = []
        for ks in range(4):
            b = fb + ks * 16
            ops.append(lambda b=b, ks=ks: a.e('ds_read_b128 %s, v%d offset:%d' % (vr(b, 4), XA + 4 * hi + ks, so), tg))
            for g in range(3):
                for t in range(2):
                    ops.append(lambda b=b, ks=ks, g=g, t=t: a.e('ds_read_b64_tr_b16 %s, v%d offset:%d' % (vr(b + 4 + 4 * g + 2 * t, 2), WA + hi, so + 8192 + ks * 6144 + g * 1024 + t * 512), tg))
        return ops
    def mfmas(st):
        fb = FR + (st & 1) * 64; ops = []
        for ks in range(4):
            b = fb + ks * 16
            ops.append(lambda b=b: a.e('v_mfma_f32_32x32x16_bf16 %s, %s, %s, %s' % (vr(AQ, 16), vr(b + 4, 4), vr(b, 4), vr(AQ, 16))))
            ops.append(lambda b=b: a.e('v_mfma_f32_32x32x16_bf16 %s, %s, %s, %s' % (vr(AK, 16), vr(b, 4), vr(b + 8, 4), vr(AK, 16))))
            ops.append(lambda b=b: a.e('v_mfma_f32_32x32x16_bf16 %s, %s, %s, %s' % (vr(AV, 16), vr(b, 4), vr(b + 12, 4), vr(AV, 16))))
        return ops
    a.wait(vm='st0'); a.e('s_barrier')
    for f in reads(0): f()
    for i in range(NS):
        a.wait(vm='st%d' % (i + 1) if i + 1 < NS else None, lg='all')
        if i + 1 < NS: a.e('s_barrier')
        fill = []
        rd = reads(i + 1) if i + 1 < NS else []
        dm = dma(i + R) if i + R < NS else []
        k = 0
        for j, r in enumerate(rd):
            fill.append(r)
            while k < len(dm) and (k + 1) * len(rd) <= (j + 1) * len(dm): fill.append(dm[k]); k += 1
        fill += dm[k:]
        interleave(a, mfmas(i), fill)
    a.e('s_mov_b32 s45, %s' % f32(LOG2E)); a.e('s_mov_b32 s46, %s' % f32(1e-6))
    TM = 68
    def phi(acc, out):
        for r in range(16): a.e('v_mul_f32 v%d, s45, v%d' % (TM + r, acc + r))
        for r in range(16): a.e('v_exp_f32_e64 v%d, v%d clamp' % (TM + r, TM + r))
        for r in range(16): a.e('v_max_f32 v%d, 0, v%d' % (acc + r, acc + r))
        for r in range(16): a.e('v_add_f32 v%d, v%d, v%d' % (acc + r, acc + r, TM + r))
        for r in range(16): a.e('v_add_f32 v%d, s46, v%d' % (acc + r, acc + r))
        for r in range(8): a.e('v_cvt_pk_bf16_f32 v%d, v%d, v%d' % (out + r, acc + 2 * r, acc + 2 * r + 1))
    PK, PV, PQ, ONE, DKV, DZ = 100, 108, 116, 124, 128, 144
    phi(AK, PK)
    for r in range(8): a.e('v_cvt_pk_bf16_f32 v%d, v%d, v%d' % (PV + r, AV + 2 * r, AV + 2 * r + 1))
    for r in range(4): a.e('v_mov_b32 v%d, 0x3f803f80' % (ONE + r))
    a.e('v_mfma_f32_32x32x16_bf16 %s, %s, %s, 0' % (vr(DKV, 16), vr(PK, 4), vr(PV, 4)))
    a.e('v_mfma_f32_32x32x16_bf16 %s, %s, %s, 0' % (vr(DZ, 16), vr(PK, 4), vr(ONE, 4)))
    a.e('v_mfma_f32_32x32x16_bf16 %s, %s, %s, %s' % (vr(DKV, 16), vr(PK + 4, 4), vr(PV + 4, 4), vr(DKV, 16)))
    a.e('v_mfma_f32_32x32x16_bf16 %s, %s, %s, %s' % (vr(DZ, 16), vr(PK + 4, 4), vr(ONE, 4), vr(DZ, 16)))
    phi(AQ, PQ)
    a.e('s_lshl_b32 s21, s16, 2'); a.e('s_lshl_b32 s22, s18, 1'); a.e('s_add_u32 s21, s21, s22')
    a.e('s_lshl_b32 s22, s15, 1'); a.e('s_add_u32 s22, s22, s17')
    a.e('s_lshl_b32 s23, s21, 16'); a.e('s_lshl_b32 s40, s22, 10'); a.e('s_add_u32 s23, s23, s40')
    a.e('s_add_u32 s40, s23, 0x%x' % WS_PQ); a.e('s_add_u32 s41, s40, 0x10000')
    a.e('buffer_store_dwordx4 %s, v4, s[36:39], s40 offen' % vr(PQ, 4))
    a.e('buffer_store_dwordx4 %s, v4, s[36:39], s41 offen' % vr(PQ + 4, 4))
    a.e('v_and_b32 v2, 16, v1'); a.e('v_cmp_ne_u32 vcc, 0, v2')
    for r in range(8): a.e('v_cndmask_b32 v%d, v%d, v%d, vcc' % (DKV + r, DKV + r, DKV + 8 + r))
    for r in range(8): a.e('v_cndmask_b32 v%d, v%d, v%d, vcc' % (DZ + r, DZ + r, DZ + 8 + r))
    a.e('v_lshlrev_b32 v5, 12, v2')
    a.e('v_lshrrev_b32 v3, 5, v1')
    a.e('v_lshl_add_u32 v5, v3, 9, v5')
    a.e('v_and_b32 v6, 15, v1'); a.e('v_lshl_add_u32 v5, v6, 5, v5')
    a.e('s_add_u32 s40, s23, 0x%x' % WS_KV)
    a.e('buffer_store_dwordx4 %s, v5, s[36:39], s40 offen' % vr(DKV, 4))
    a.e('buffer_store_dwordx4 %s, v5, s[36:39], s40 offen offset:16' % vr(DKV + 4, 4))
    a.e('v_lshlrev_b32 v5, 8, v2')
    a.e('v_lshl_add_u32 v5, v3, 5, v5')
    a.e('s_lshr_b32 s40, s23, 4'); a.e('s_add_u32 s40, s40, 0x%x' % WS_Z)
    a.e('s_mov_b32 exec_lo, 0x00010001'); a.e('s_mov_b32 exec_hi, 0x00010001')
    a.e('buffer_store_dwordx4 %s, v5, s[36:39], s40 offen' % vr(DZ, 4))
    a.e('buffer_store_dwordx4 %s, v5, s[36:39], s40 offen offset:16' % vr(DZ + 4, 4))
    a.label('k1_end')
    a.e('s_endpgm')

R8, SLOT16 = 8, 16384

def k2(a):
    kernel_head(a, 'k2_kernel')
    a.e('s_cmp_ge_u32 s2, 256'); a.e('s_cbranch_scc1 k2_end')
    a.e('s_load_dwordx4 s[4:7], s[0:1], %d' % A_W1)
    a.e('s_load_dwordx2 s[10:11], s[0:1], %d' % A_WS)
    a.e('v_and_b32 v1, 63, v0'); a.e('v_lshrrev_b32 v2, 6, v0')
    a.e('v_readfirstlane_b32 s12, v2')
    a.e('s_and_b32 s13, s2, 7'); a.e('s_lshr_b32 s14, s2, 3')
    a.e('v_lshlrev_b32 v4, 4, v1')
    a.e('s_cmp_ge_u32 s14, 28'); a.e('s_cbranch_scc1 k2_o')
    a.e('s_and_b32 s15, s13, 1'); a.e('s_lshl_b32 s15, s15, 2'); a.e('s_and_b32 s16, s14, 3'); a.e('s_add_u32 s15, s15, s16')
    a.e('s_lshr_b32 s16, s13, 1'); a.e('s_mul_i32 s16, s16, 7'); a.e('s_lshr_b32 s17, s14, 2'); a.e('s_add_u32 s16, s16, s17')
    DT, FT = 15, 16
    a.e('s_and_b32 s17, s12, 1'); a.e('s_lshr_b32 s18, s12, 1')
    TO0, TO1, FO = 5, 6, 7
    t_dma_voff(a, TO0, 1, 2, 12, 3584, 21)
    a.e('v_add_u32 v6, %d, v5' % (8 * 3584 - 1024))
    a.e('s_lshl_b32 s43, s12, 11')
    a.e('v_add_u32 v7, s43, v4')
    a.e('s_waitcnt lgkmcnt(0)')
    srd(a, 24, 4, 5, 2048 * 3584); srd(a, 28, 6, 7, 3584); srd(a, 36, 10, 11, WS_SIZE)
    a.e('s_lshl_b32 s40, s16, 7')
    a.e('s_lshl_b32 s41, s15, 18')
    if WS_H: a.e('s_add_u32 s41, s41, 0x%x' % WS_H)
    NS = 32
    def dma(st):
        sb = (st % R8) * SLOT16; tg = 'st%d' % st
        def f0():
            a.e('s_add_u32 m0, s43, %d' % sb)
            a.e('buffer_load_dwordx4 v5, s[24:27], s40 offen lds', tg)
        def f1():
            a.e('buffer_load_dwordx4 v6, s[24:27], s40 offen offset:1024 lds', tg)
            a.e('s_add_u32 s40, s40, %d' % (64 * 3584))
        def f2():
            a.e('s_add_u32 m0, s43, %d' % (sb + 8192))
            a.e('buffer_load_dwordx4 v7, s[36:39], s41 offen lds', tg)
        def f3():
            a.e('buffer_load_dwordx4 v7, s[36:39], s41 offen offset:1024 lds', tg)
            a.e('s_add_u32 s41, s41, 8192')
        return [f0, f1, f2, f3]
    a.e('v_lshrrev_b32 v2, 5, v1'); a.e('v_lshlrev_b32 v2, 3, v2')
    a.e('s_lshl_b32 s21, s17, 6'); a.e('s_add_u32 s21, s21, s40')
    for i in range(4): a.e('buffer_load_dwordx2 %s, v2, s[28:31], s21 offen offset:%d' % (vr(40 + 2 * i, 2), 16 * i), 'bias')
    for st in range(R8):
        for f in dma(st): f()
    AA, BA = 8, 10
    tr_lane_addr(a, AA, 1, 2, 3, 8, 17); a.e('v_add_u32 v9, 0x10000, v8')
    tr_lane_addr(a, BA, 1, 2, 3, 8, 18); a.e('v_add_u32 v11, 0x10000, v10')
    ACC = 16
    a.wait(vm='bias')
    for i in range(8):
        a.e('v_lshlrev_b32 v%d, 16, v%d' % (ACC + 2 * i, 40 + i))
        a.e('v_and_b32 v%d, 0xffff0000, v%d' % (ACC + 2 * i + 1, 40 + i))
    FR = 48
    def reads(st):
        sl = st % R8; hi = sl >= 4; so = (sl & 3) * SLOT16; fb = FR + (st & 1) * 32; tg = 'rd%d' % st
        ops = []
        for ks in range(4):
            for op in range(2):
                for t in range(2):
                    ops.append(lambda ks=ks, op=op, t=t: a.e('ds_read_b64_tr_b16 %s, v%d offset:%d' % (vr(fb + ks * 8 + op * 4 + 2 * t, 2), (AA, BA)[op] + hi, so + op * 8192 + ks * 2048 + t * 512), tg))
        return ops
    def mfmas(st):
        fb = FR + (st & 1) * 32
        return [lambda ks=ks: a.e('v_mfma_f32_32x32x16_bf16 %s, %s, %s, %s' % (vr(ACC, 16), vr(fb + ks * 8, 4), vr(fb + ks * 8 + 4, 4), vr(ACC, 16))) for ks in range(4)]
    ring_loop(a, NS, R8, dma, reads, mfmas)
    c = math.sqrt(2 / math.pi)
    k0 = -2 * c * LOG2E; k1_ = k0 * 0.044715
    a.e('s_mov_b32 s45, %s' % f32(k1_)); a.e('v_mov_b32 v47, %s' % f32(k0))
    T = 48
    for r in range(16): a.e('v_mul_f32 v%d, v%d, v%d' % (T + r, ACC + r, ACC + r))
    for r in range(16): a.e('v_fma_f32 v%d, v%d, s45, v47' % (T + r, T + r))
    for r in range(16): a.e('v_mul_f32 v%d, v%d, v%d' % (T + r, T + r, ACC + r))
    for r in range(16): a.e('v_exp_f32 v%d, v%d' % (T + r, T + r))
    for r in range(16): a.e('v_add_f32 v%d, 1.0, v%d' % (T + r, T + r))
    for r in range(16): a.e('v_rcp_f32 v%d, v%d' % (T + r, T + r))
    for r in range(16): a.e('v_mul_f32 v%d, v%d, v%d' % (T + r, T + r, ACC + r))
    for r in range(8): a.e('v_cvt_pk_bf16_f32 v%d, v%d, v%d' % (64 + r, T + 2 * r, T + 2 * r + 1))
    a.e('s_mul_i32 s21, s15, 229376'); a.e('s_lshl_b32 s22, s16, 13'); a.e('s_add_u32 s21, s21, s22')
    a.e('s_lshl_b32 s22, s17, 12'); a.e('s_add_u32 s21, s21, s22'); a.e('s_lshl_b32 s22, s18, 10'); a.e('s_add_u32 s21, s21, s22')
    a.e('s_add_u32 s21, s21, 0x%x' % WS_U)
    a.e('buffer_store_dwordx4 v[64:67], v4, s[36:39], s21 offen')
    a.e('buffer_store_dwordx4 v[68:71], v4, s[36:39], s21 offen offset:2048')
    a.e('s_endpgm')
    a.label('k2_o'); a.reset()
    a.e('s_lshl_b32 s15, s13, 2'); a.e('s_add_u32 s15, s15, s14'); a.e('s_sub_u32 s15, s15, 28')
    a.e('s_waitcnt lgkmcnt(0)')
    srd(a, 36, 10, 11, WS_SIZE)
    a.e('s_lshl_b32 s16, s15, 16'); a.e('s_lshl_b32 s17, s12, 14'); a.e('s_add_u32 s16, s16, s17')
    a.e('s_add_u32 s17, s16, 0x%x' % WS_KV)
    a.e('s_lshr_b32 s18, s16, 4'); a.e('s_add_u32 s18, s18, 0x%x' % WS_Z)
    a.e('s_add_u32 s19, s16, 0x%x' % WS_PQ)
    a.e('v_and_b32 v5, 3, v1'); a.e('v_lshlrev_b32 v5, 4, v5')
    KVL, ZL, PQL = 8, 72, 136
    for p in range(16):
        if p and p % 4 == 0: a.e('s_add_u32 s17, s17, 4096')
        a.e('buffer_load_dwordx4 %s, v4, s[36:39], s17 offen offset:%d' % (vr(KVL + 4 * p, 4), (p % 4) * 1024), 'kv')
    for p in range(16):
        a.e('buffer_load_dwordx4 %s, v5, s[36:39], s18 offen offset:%d' % (vr(ZL + 4 * p, 4), p * 64), 'z')
    for p in range(16):
        if p and p % 4 == 0: a.e('s_add_u32 s19, s19, 4096')
        a.e('buffer_load_dwordx4 %s, v4, s[36:39], s19 offen offset:%d' % (vr(PQL + 4 * p, 4), (p % 4) * 1024), 'pq%d' % p)
    a.wait(vm='kv')
    for base in (KVL, ZL):
        if base == ZL: a.wait(vm='z')
        step = 8
        while step >= 1:
            for p in range(step):
                for j in range(4): a.e('v_add_f32 v%d, v%d, v%d' % (base + 4 * p + j, base + 4 * p + j, base + 4 * (p + step) + j))
            step //= 2
    a.e('s_mul_i32 s20, s12, 1088')
    a.e('v_add_u32 v6, s20, v4'); a.e('v_add_u32 v7, s20, v5')
    a.e('ds_write_b128 v6, %s' % vr(KVL, 4)); a.e('ds_write_b128 v7, %s offset:1024' % vr(ZL, 4))
    a.e('v_lshrrev_b32 v2, 5, v1'); a.e('v_and_b32 v3, 15, v1')
    a.e('v_lshlrev_b32 v6, 9, v2'); a.e('v_lshl_add_u32 v6, v3, 5, v6')
    a.e('v_lshlrev_b32 v7, 5, v2'); a.e('v_add_u32 v7, 1024, v7')
    a.e('v_and_b32 v3, 16, v1'); a.e('v_cmp_ne_u32 vcc, 0, v3')
    a.e('v_cndmask_b32 v6, v6, v7, vcc')
    a.wait(lg='all'); a.e('s_barrier')
    for w in range(4):
        for j in range(2): a.e('ds_read_b128 %s, v6 offset:%d' % (vr(16 + w * 8 + 4 * j, 4), w * 1088 + 16 * j))
    a.wait(lg='all')
    for j in range(8): a.e('v_add_f32 v%d, v%d, v%d' % (16 + j, 16 + j, 24 + j)); a.e('v_add_f32 v%d, v%d, v%d' % (32 + j, 32 + j, 40 + j))
    for j in range(8): a.e('v_add_f32 v%d, v%d, v%d' % (16 + j, 16 + j, 32 + j))
    for j in range(4): a.e('v_cvt_pk_bf16_f32 v%d, v%d, v%d' % (8 + j, 16 + 2 * j, 17 + 2 * j))
    a.e('s_lshl_b32 s20, s12, 19'); a.e('s_lshl_b32 s21, s15, 11'); a.e('s_add_u32 s20, s20, s21'); a.e('s_add_u32 s20, s20, 0x%x' % WS_O)
    a.e('s_mov_b32 s22, %s' % f32(1e-6))
    D = [16, 32, 48, 64]
    def mf(p):
        a.wait(vm='pq%d' % p)
        a.e('v_mfma_f32_32x32x16_bf16 %s, %s, %s, 0' % (vr(D[p % 4], 16), vr(8, 4), vr(PQL + 4 * p, 4)))
    def fin(p):
        d = D[p % 4]
        a.e('v_add_f32 v%d, s22, v%d' % (d + 8, d + 8)); a.e('v_rcp_f32 v%d, v%d' % (d + 8, d + 8))
        for j in range(8): a.e('v_mul_f32 v%d, v%d, v%d' % (d + j, d + j, d + 8))
        o = 80 + 4 * (p % 4)
        for j in range(4): a.e('v_cvt_pk_bf16_f32 v%d, v%d, v%d' % (o + j, d + 2 * j, d + 2 * j + 1))
        a.e('buffer_store_dwordx4 %s, v4, s[36:39], s20 offen offset:%d' % (vr(o, 4), (p & 1) * 1024), 'o')
        if p & 1: a.e('s_add_u32 s20, s20, 0x10000')
    mf(0); mf(1)
    for p in range(16):
        if p + 2 < 16: mf(p + 2)
        fin(p)
    a.label('k2_end')
    a.e('s_endpgm')

def ring_loop(a, NS, R, dma, reads, mfmas):
    a.wait(vm='st0'); a.e('s_barrier')
    for f in reads(0): f()
    for i in range(NS):
        a.wait(vm='st%d' % (i + 1) if i + 1 < NS else None, lg='all')
        if i + 1 < NS: a.e('s_barrier')
        rd = reads(i + 1) if i + 1 < NS else []
        dm = dma(i + R) if i + R < NS else []
        fill = []; k = 0
        for j, r in enumerate(rd):
            while k < len(dm) and k * len(rd) <= j * len(dm): fill.append(dm[k]); k += 1
            fill.append(r)
        fill += dm[k:]
        interleave(a, mfmas(i), fill)

def k3(a):
    kernel_head(a, 'k3_kernel')
    a.e('s_cmp_ge_u32 s2, 256'); a.e('s_cbranch_scc1 k3_end')
    a.e('s_load_dwordx2 s[4:5], s[0:1], %d' % A_WO)
    a.e('s_load_dwordx4 s[8:11], s[0:1], %d' % A_W2)
    a.e('s_load_dwordx2 s[6:7], s[0:1], %d' % A_OUT)
    a.e('s_load_dwordx2 s[48:49], s[0:1], %d' % A_WS)
    a.e('v_and_b32 v1, 63, v0'); a.e('v_lshrrev_b32 v2, 6, v0')
    a.e('v_readfirstlane_b32 s12, v2')
    a.e('s_and_b32 s13, s2, 7'); a.e('s_lshr_b32 s14, s2, 3')
    a.e('v_lshlrev_b32 v4, 4, v1')
    a.e('s_and_b32 s15, s13, 1'); a.e('s_lshl_b32 s15, s15, 2'); a.e('s_and_b32 s16, s14, 3'); a.e('s_add_u32 s15, s15, s16')
    a.e('s_lshr_b32 s16, s13, 1'); a.e('s_lshl_b32 s16, s16, 3'); a.e('s_lshr_b32 s17, s14, 2'); a.e('s_add_u32 s16, s16, s17')
    a.e('s_and_b32 s17, s12, 1'); a.e('s_lshr_b32 s18, s12, 1')
    t_dma_voff(a, 5, 1, 2, 12, 1024, 21); a.e('v_add_u32 v6, %d, v5' % (8 * 1024 - 1024))
    t_dma_voff(a, 12, 1, 2, 12, 4096, 21); a.e('v_add_u32 v13, %d, v12' % (8 * 4096 - 1024))
    a.e('s_lshl_b32 s43, s12, 11')
    a.e('v_add_u32 v7, s43, v4')
    a.e('s_waitcnt lgkmcnt(0)')
    srd(a, 24, 4, 5, 512 * 1024); srd(a, 28, 8, 9, 1792 * 4096); srd(a, 32, 10, 11, 4096); srd(a, 36, 48, 49, WS_SIZE); srd(a, 52, 6, 7, 2048 * 1024)
    a.e('s_lshl_b32 s40, s15, 7')
    a.e('s_lshl_b32 s41, s16, 16'); a.e('s_add_u32 s41, s41, 0x%x' % WS_O)
    a.e('s_lshl_b32 s44, s16, 7')
    a.e('s_mul_i32 s45, s15, 229376'); a.e('s_add_u32 s45, s45, 0x%x' % WS_U)
    NA, NS = 8, 36
    def dma(st):
        sb = (st % R8) * SLOT16; tg = 'st%d' % st
        isa = st < NA
        v0_, v1_, srd_, so, inc, fo = (5, 6, 24, 40, 65536, 41) if isa else (12, 13, 28, 44, 64 * 4096, 45)
        def f0():
            a.e('s_add_u32 m0, s43, %d' % sb)
            a.e('buffer_load_dwordx4 v%d, %s, s%d offen lds' % (v0_, sr(srd_, 4), so), tg)
        def f1():
            a.e('buffer_load_dwordx4 v%d, %s, s%d offen offset:1024 lds' % (v1_, sr(srd_, 4), so), tg)
            a.e('s_add_u32 s%d, s%d, %d' % (so, so, inc))
        def f2():
            a.e('s_add_u32 m0, s43, %d' % (sb + 8192))
            a.e('buffer_load_dwordx4 v7, s[36:39], s%d offen lds' % fo, tg)
        def f3():
            a.e('buffer_load_dwordx4 v7, s[36:39], s%d offen offset:1024 lds' % fo, tg)
            a.e('s_add_u32 s%d, s%d, 8192' % (fo, fo))
        return [f0, f1, f2, f3]
    a.e('v_and_b32 v2, 31, v1'); a.e('s_lshl_b32 s21, s16, 6'); a.e('s_lshl_b32 s22, s18, 5'); a.e('s_add_u32 s21, s21, s22')
    a.e('v_add_u32 v14, s21, v2')
    a.e('v_lshlrev_b32 v2, 3, v14'); a.e('v_lshlrev_b32 v3, 1, v14')
    a.e('s_mov_b32 s22, 0x%x' % WS_G)
    a.e('buffer_load_dwordx2 v[120:121], v2, s[36:39], s22 offen', 'g')
    a.e('buffer_load_ushort v122, v3, s[32:35], 0 offen', 'g')
    for st in range(R8):
        for f in dma(st): f()
    tr_lane_addr(a, 8, 1, 2, 3, 4, 17); a.e('v_add_u32 v9, 0x10000, v8')
    tr_lane_addr(a, 10, 1, 2, 3, 4, 18); a.e('v_add_u32 v11, 0x10000, v10')
    a.e('s_lshl_b32 s21, s18, 10'); a.e('v_add_u32 v112, s21, v4'); a.e('v_add_u32 v113, 0x10000, v112')
    a.e('s_lshl_b32 s21, s17, 10'); a.e('v_add_u32 v114, s21, v4'); a.e('v_add_u32 v115, 0x10000, v114')
    ACA, ACY = 16, 32
    for r in range(16): a.e('v_mov_b32 v%d, 0' % (ACA + r))
    a.wait(vm='g')
    a.e('v_lshlrev_b32 v122, 16, v122')
    for r in range(16): a.e('v_mov_b32 v%d, v122' % (ACY + r))
    FR = 48
    def reads(st):
        sl = st % R8; hi = sl >= 4; so = (sl & 3) * SLOT16; fb = FR + (st & 1) * 32; tg = 'rd%d' % st
        isa = st < NA
        ta = (8 if isa else 10) + hi; fa = (112 if isa else 114) + hi
        ops = []
        for ks in range(4):
            for t in range(2):
                ops.append(lambda ks=ks, t=t: a.e('ds_read_b64_tr_b16 %s, v%d offset:%d' % (vr(fb + ks * 8 + 2 * t, 2), ta, so + ks * 2048 + t * 1024), tg))
            ops.append(lambda ks=ks: a.e('ds_read_b128 %s, v%d offset:%d' % (vr(fb + ks * 8 + 4, 4), fa, so + 8192 + ks * 2048), tg))
        return ops
    def mfmas(st):
        fb = FR + (st & 1) * 32
        if st < NA:
            return [lambda ks=ks: a.e('v_mfma_f32_32x32x16_bf16 %s, %s, %s, %s' % (vr(ACA, 16), vr(fb + ks * 8, 4), vr(fb + ks * 8 + 4, 4), vr(ACA, 16))) for ks in range(4)]
        return [lambda ks=ks: a.e('v_mfma_f32_32x32x16_bf16 %s, %s, %s, %s' % (vr(ACY, 16), vr(fb + ks * 8 + 4, 4), vr(fb + ks * 8, 4), vr(ACY, 16))) for ks in range(4)]
    ring_loop(a, NS, R8, dma, reads, mfmas)
    for r in range(16): a.e('v_mul_f32 v%d, v120, v%d' % (ACA + r, ACA + r))
    for r in range(16): a.e('v_fmac_f32 v%d, v121, v%d' % (ACA + r, ACY + r))
    for r in range(8): a.e('v_cvt_pk_bf16_f32 v%d, v%d, v%d' % (48 + r, ACA + 2 * r, ACA + 2 * r + 1))
    for k in (0, 2):
        a.e('v_permlane32_swap_b32 v%d, v%d' % (48 + 2 * k, 50 + 2 * k))
        a.e('v_permlane32_swap_b32 v%d, v%d' % (49 + 2 * k, 51 + 2 * k))
    a.e('v_lshlrev_b32 v2, 10, v14'); a.e('v_lshrrev_b32 v3, 5, v1'); a.e('v_lshl_add_u32 v2, v3, 4, v2')
    a.e('s_lshl_b32 s21, s15, 7'); a.e('s_lshl_b32 s22, s17, 6'); a.e('s_add_u32 s21, s21, s22')
    a.e('buffer_store_dwordx4 v[48:51], v2, s[52:55], s21 offen')
    a.e('buffer_store_dwordx4 v[52:55], v2, s[52:55], s21 offen offset:32')
    a.label('k3_end')
    a.e('s_endpgm')

def kd(name, vg, sg=80):
    return '''.p2align 6
.amdhsa_kernel %s
  .amdhsa_next_free_vgpr %d
  .amdhsa_next_free_sgpr %d
  .amdhsa_accum_offset %d
  .amdhsa_group_segment_fixed_size 0
  .amdhsa_kernarg_size 96
  .amdhsa_user_sgpr_count 2
  .amdhsa_user_sgpr_kernarg_segment_ptr 1
  .amdhsa_system_sgpr_workgroup_id_x 1
.end_amdhsa_kernel
''' % (name, vg, sg, (vg + 3) // 4 * 4)

def main(out, extra_empty=0):
    a = Asm()
    k1(a); k2(a); k3(a)
    hdr = '; generated by gen/gen1.py\n'
    hdr += '; @launch kernel=k1_kernel grid=(256,1,1) block=(256,1,1) lds=131072\n'
    hdr += '; @launch kernel=k2_kernel grid=(256,1,1) block=(256,1,1) lds=131072\n'
    hdr += '; @launch kernel=k3_kernel grid=(256,1,1) block=(256,1,1) lds=131072\n'
    for i in range(extra_empty): hdr += '; @launch kernel=ke_kernel grid=(256,1,1) block=(256,1,1) lds=0\n'
    if extra_empty:
        kernel_head(a, 'ke_kernel'); a.e('s_endpgm')
    s = hdr + '.amdgcn_target "amdgcn-amd-amdhsa--gfx950"\n.text\n' + a.text()
    s += '.section .rodata,"a"\n' + kd('k1_kernel', 240) + kd('k2_kernel', 200) + kd('k3_kernel', 128)
    if extra_empty: s += kd('ke_kernel', 8)
    open(out, 'w').write(s)

if __name__ == '__main__':
    main(sys.argv[1] if len(sys.argv) > 1 else 'cdna_kernels/%s.s' % NAME, int(sys.argv[2]) if len(sys.argv) > 2 else 0)
```

```python
import sys, math
from asmlib import *

NAME = 'gated_mix__linear_attn_block__mixer_token_mlp__prompt'
WS_H, WS_U, WS_O, WS_KV, WS_G, WS_C = 0x010000, 0x220000, 0x410000, 0x620000, 0x630000, 0x640000
WS_SIZE = 0x1000000
C_H, C_O, C_KV, C_U = WS_C, WS_C + 32 * 256, WS_C + 64 * 256, WS_C + 72 * 256
LOG2E = math.log2(math.e)
TSOFF = 0xF00000

class P:
    TS = False
    LA = 3
    LAQ = 2
    NT_POOL = 13; NF_POOL = 6; LAF = 4; E0 = 2; NE = 7; STAG = 1
    AU = 6; BHP = 3; TSSET = 0
    XOR = 1; PFX = 1; TLB = 1; SL = 16
    BH = 0
    BKV = 16
    GA = 23
    GB = 27
    GC = 30
    GD = 30
    NBS = 7; YO = 8; PRERED = 1
    NPRE = 2
    PFQ = 5
    PFJ = 4
    NTQ = 0; NTX = 0; NTG = 0; NTY = 0; NTPF = 0; NTQL = 0; NTGL = 0
    SPIN = 200000
    TRACE = 0
    DBGT = 0
    LNNT = 0
    FRONT = 2
    GO = 31
    AU0 = 5
    AU1 = 7
    CODEPF = 1

S_W, S_X, S_L, S_RT, S_HG, S_FT, S_LL, S_LH = 3, 4, 5, 6, 7, 8, 9, 10
SRD_WS = 40

def srd(a, d, lo, size):
    a.e('s_mov_b32 s%d, s%d' % (d, lo)); a.e('s_mov_b32 s%d, s%d' % (d + 1, lo + 1))
    a.e('s_mov_b32 s%d, 0x%x' % (d + 2, size)); a.e('s_mov_b32 s%d, 0x20000' % (d + 3))

def stamp(a, j, ts=None):
    if P.TS and (ts is None or ts == P.TSSET): a.e('s_memrealtime s[%d:%d]' % (80 + 2 * j, 81 + 2 * j))
def stamp_init(a):
    if P.TS:
        for j in range(16): a.e('s_mov_b32 s%d, 0' % (80 + j))
def stamp_store(a, slot):
    if not P.TS: return
    a.e('s_mov_b64 exec, -1'); a.e('s_waitcnt vmcnt(0) lgkmcnt(0)')
    for j in range(16): a.e('v_mov_b32 v%d, s%d' % (8 + j, 80 + j))
    a.e('s_lshl_b32 s79, s2, 5'); a.e('s_add_u32 s79, s79, 0x%x' % (TSOFF + slot * 8192))
    a.e('v_mov_b32 v2, s79'); a.e('v_add_u32 v3, 8192, v2')
    a.e('s_mov_b64 exec, 1')
    a.e('global_store_dwordx4 v2, v[8:11], s[38:39]'); a.e('global_store_dwordx4 v2, v[12:15], s[38:39] offset:16')
    a.e('global_store_dwordx4 v3, v[16:19], s[38:39]'); a.e('global_store_dwordx4 v3, v[20:23], s[38:39] offset:16')

def tr_lane_addr(a, dst, lane, t0, hf_rows, ch_s):
    a.e('v_bfe_u32 v%d, v%d, 2, 2' % (t0, lane))
    a.e('v_lshlrev_b32 v%d, 7, v%d' % (dst, t0))
    a.e('v_lshrrev_b32 v%d, 1, v%d' % (t0, t0))
    a.e('v_xor_b32 v%d, s%d, v%d' % (t0, ch_s, t0))
    a.e('v_lshl_add_u32 v%d, v%d, 6, v%d' % (dst, t0, dst))
    a.e('v_bfe_u32 v%d, v%d, 4, 1' % (t0, lane))
    a.e('v_lshl_add_u32 v%d, v%d, 5, v%d' % (dst, t0, dst))
    a.e('v_and_b32 v%d, 3, v%d' % (t0, lane))
    a.e('v_lshl_add_u32 v%d, v%d, 3, v%d' % (dst, t0, dst))
    a.e('v_lshrrev_b32 v%d, 5, v%d' % (t0, lane))
    a.e('v_lshl_add_u32 v%d, v%d, %d, v%d' % (dst, t0, int(math.log2(hf_rows * 128)), dst))

def t_voffs(a, dst, lane, t0, pitch):
    a.e('v_lshrrev_b32 v%d, 3, v%d' % (dst, lane))
    a.e('v_mul_u32_u24 v%d, %d, v%d' % (dst, pitch, dst))
    a.e('v_bfe_u32 v%d, v%d, 4, 1' % (t0, lane))
    a.e('v_lshlrev_b32 v%d, 2, v%d' % (t0, t0))
    a.e('v_xor_b32 v%d, v%d, v%d' % (t0, lane, t0))
    a.e('v_and_b32 v%d, 7, v%d' % (t0, t0))
    a.e('v_lshl_add_u32 v%d, v%d, 4, v%d' % (dst, t0, dst))
    for i in range(1, 4): a.e('v_add_u32 v%d, %d, v%d' % (dst + i, i * (8 * pitch - 1024), dst))

def interleave(main, fill):
    n = max(1, (len(main) * P.FRONT) // 4); k = len(fill); j = 0
    for i, m in enumerate(main):
        m()
        upto = min(k, (k * (i + 1)) // n)
        while j < upto: fill[j](); j += 1
    while j < k: fill[j](); j += 1

def spread(main, fill):
    n = len(main); k = len(fill); j = 0
    for i, m in enumerate(main):
        m()
        while j < (k * (i + 1)) // n: fill[j](); j += 1

def mix(x, y):
    out = []; k = 0
    for j, r in enumerate(x):
        out.append(r)
        while k < (len(y) * (j + 1)) // len(x): out.append(y[k]); k += 1
    return out + y[k:]

def dpp_reduce(a, regs):
    for pat in ('row_shr:1 row_mask:0xf', 'row_shr:2 row_mask:0xf', 'row_shr:4 row_mask:0xf', 'row_shr:8 row_mask:0xf',
                'row_bcast:15 row_mask:0xa', 'row_bcast:31 row_mask:0xc'):
        for r in regs:
            a.e('v_add_f32_dpp v%d, v%d, v%d %s bank_mask:0xf' % (r, r, r, pat))

Q = ['Q%d' % i for i in range(8)]; G = ['G%d' % i for i in range(32)]
A = ['A%d' % i for i in range(8)]; Y = ['Y%d' % i for i in range(28)]
def tl_blocks(st): return [st + 'q', st + 'k'] if st[0] == 'Q' else [st + 'T']
def fl_blocks(st): return [st + 'x', st + 'v'] if st[0] == 'Q' else [st + 'F']

def barriers(spare):
    out = []
    def phase(sts, pending):
        for i, s in enumerate(sts):
            out.append((s, s, pending if i == 0 else [sts[i - 1]]))
        return [sts[-1]]
    pend = phase(Q, [])
    if not spare:
        pend = phase(G, pend)
    elif P.PRERED:
        out.append(('S0', None, []))
    out.append(('BS', None, pend))
    phase(A + Y, [])
    return out

def paced(sched, sts, first, la):
    n = len(sts); rem = n - first
    for j in range(first, n):
        b = min(((j - first) * (n - la)) // rem, j - la)
        sched.setdefault(sts[b], []).append(sts[j])

def tl_sched(var):
    s = {'init': ['Q0']}
    s['init2'] = ['Q1']
    for k in range(0, 6): s['Q%d' % k] = ['Q%d' % (k + 2)]
    if var == 'E':
        s['init2'] = G[:P.E0]; s['Q0'] = G[P.E0:P.NE] + ['Q1', 'Q2']
        s['Q6'] = G[P.NE:8]
    if var == 'L':
        s['Q6'] = G[0:2]; s['Q7'] = G[2:4]; s['G0'] = G[4:6]; s['G1'] = G[6:8]
    seq = A + Y
    if var != 'S':
        t = {}; paced(t, G[2:], 6, P.LA)
        for b, l in t.items(): s.setdefault(b, []).extend(l)
        s.setdefault('G30', []).extend(seq[:P.NPRE])
    else:
        s['Q7'] = seq[:P.NPRE]
    s['BS'] = seq[P.NPRE:P.NT_POOL]
    for k in range(1, 8): s['A%d' % k] = [seq[P.NT_POOL + k - 1]]
    first = P.NT_POOL + 7 - 8
    t = {}; paced(t, Y, first, P.LA)
    for b, l in t.items(): s[b] = l
    return s

def fl_sched(var):
    s = {'init': ['Q0', 'Q1']}
    for k in range(0, 6): s['Q%d' % k] = ['Q%d' % (k + 2)]
    la = P.LAF
    if var == 'E': s['Q6'] = G[:2]; s['Q7'] = G[2:la]
    if var == 'L': s['Q7'] = G[:la]
    if var != 'S':
        for k in range(32 - la): s['G%d' % k] = ['G%d' % (k + la)]
    s['BS'] = A[:la]
    for k in range(8 - la): s['A%d' % k] = ['A%d' % (k + la)]
    n0 = min(la, P.NF_POOL - (8 - P.AU))
    s.setdefault('A%d' % P.AU, []).extend(Y[:n0])
    nx = n0
    for k in range(P.AU + 1, 8):
        if nx < la: s['A%d' % k] = [Y[nx]]; nx += 1
    assert nx == la
    for k in range(28 - la): s['Y%d' % k] = ['Y%d' % (k + la)]
    return s

class Alloc:
    def __init__(self):
        self.loc = {}
        nt, nf = P.NT_POOL, P.NF_POOL
        self.tpool = list(range(nt)); self.fpool = list(range(nt, nt + nf))
    def plan(self, which, var):
        pool = list(self.tpool if which == 'T' else self.fpool)
        blocks = tl_blocks if which == 'T' else fl_blocks
        bars = barriers(var == 'S')
        sched = (tl_sched if which == 'T' else fl_sched)(var)
        free = list(pool); held = {}; issue = {}
        for at in range(-1, len(bars)):
            name = 'init' if at < 0 else bars[at][0]
            if at >= 0:
                for fs in bars[at][2]:
                    for b in blocks(fs): free.append(held.pop(b))
            lst = []
            for st in sched.get(name, []) + (sched.get('init2', []) if at < 0 else []):
                for b in blocks(st):
                    if b in self.loc:
                        blk = self.loc[b]; assert blk in free, (which, var, name, b, blk, free); free.remove(blk)
                    else:
                        assert free, (which, var, name, b, 'no free block')
                        blk = free.pop(0); self.loc[b] = blk
                    held[b] = blk; lst.append((b, blk))
            issue[name] = lst
            if at + 1 < len(bars) and bars[at + 1][1] is not None:
                for b in blocks(bars[at + 1][1]): assert b in held, (which, var, bars[at + 1], 'not issued before needed')
        return issue

def load_block(a, blk, vo, nv, srd_, so, so2, half_stride, flags, tag):
    a.e('s_mov_b32 m0, %d' % (blk * 8192))
    a.e('s_add_u32 s%d, s%d, %d' % (so2, so, half_stride))
    for i in range(4):
        a.e('buffer_load_dwordx4 v%d, %s, s%d offen offset:%d %slds' % (vo + (i if nv == 4 else 0), sr(srd_, 4), so, i * 1024, flags), tag)
    a.e('s_mov_b32 m0, %d' % (blk * 8192 + 4096))
    for i in range(4):
        a.e('buffer_load_dwordx4 v%d, %s, s%d offen offset:%d %slds' % (vo + (i if nv == 4 else 0), sr(srd_, 4), so2, i * 1024, flags), tag)

def advance(a, kt, n):
    a.e('s_add_u32 s%d, s%d, 1' % (kt, kt)); a.e('s_cmp_eq_u32 s%d, %d' % (kt, n)); a.e('s_cselect_b32 s%d, 0, s%d' % (kt, kt))

def rot_init(a, kq, kg, ka, ky, t):
    a.e('s_lshl_b32 s%d, s%d, 1' % (t, S_LL)); a.e('s_add_u32 s%d, s%d, s%d' % (kq, t, S_LH)); a.e('s_and_b32 s%d, s%d, 7' % (kq, kq))
    a.e('s_mov_b32 s%d, s%d' % (ka, kq))
    a.e('s_lshl_b32 s%d, s%d, 3' % (t, S_LL)); a.e('s_mul_i32 s%d, s%d, 5' % (kg, S_LH)); a.e('s_add_u32 s%d, s%d, s%d' % (kg, kg, t)); a.e('s_and_b32 s%d, s%d, 31' % (kg, kg))
    a.e('s_mul_i32 s%d, s%d, 7' % (t, S_LH)); a.e('s_add_u32 s%d, s%d, 1' % (t, t)); a.e('s_lshr_b32 s%d, s%d, 1' % (t, t))
    a.e('s_mul_i32 s%d, s%d, 7' % (ky, S_LL)); a.e('s_add_u32 s%d, s%d, s%d' % (ky, ky, t))
    a.e('s_sub_u32 s%d, s%d, 28' % (t, ky)); a.e('s_cmp_ge_u32 s%d, 28' % ky); a.e('s_cselect_b32 s%d, s%d, s%d' % (ky, t, ky))

def spin_scalar(a, name, off_s, want, first_issued=False, sleep=0):
    a.e('s_mov_b32 s75, %d' % P.SPIN)
    if first_issued:
        a.e('s_branch %s_chk' % name)
    a.label(name)
    a.e('s_mov_b32 s74, 0')
    a.e('s_atomic_add s74, s[38:39], s%d glc' % off_s)
    a.label(name + '_chk')
    a.e('s_waitcnt lgkmcnt(0)')
    a.e('s_cmp_eq_u32 s74, %d' % want); a.e('s_cbranch_scc1 %s_ok' % name)
    if sleep: a.e('s_sleep %d' % sleep)
    a.e('s_sub_u32 s75, s75, 1'); a.e('s_cmp_lg_u32 s75, 0'); a.e('s_cbranch_scc1 %s' % name)
    a.label(name + '_ok')

TROFF = 0xE00000
NAMES = [b[0] for b in barriers(False)]
def tr_bar(a, name):
    if not P.TRACE or name not in NAMES:
        a.e('s_barrier'); return
    i = NAMES.index(name)
    a.e('s_memrealtime s[96:97]')
    a.e('s_barrier')
    a.e('s_memrealtime s[98:99]')
    a.e('s_waitcnt lgkmcnt(0)')
    a.e('v_writelane_b32 v%d, s96, %d' % (40 + i // 64, i % 64))
    a.e('v_writelane_b32 v%d, s98, %d' % (42 + i // 64, i % 64))
def tr_init(a):
    if P.TRACE:
        for r in range(40, 44): a.e('v_mov_b32 v%d, 0' % r)
def tr_store(a, which):
    if not P.TRACE: return
    a.e('s_lshl_b32 s79, s2, 11'); a.e('s_add_u32 s79, s79, 0x%x' % (TROFF + which * 1024))
    a.e('v_lshlrev_b32 v2, 2, v1'); a.e('v_add_u32 v2, s79, v2')
    for r in range(4): a.e('global_store_dword v2, v%d, s[38:39] offset:%d' % (40 + r, r * 256))

def signal(a, off_s):
    a.e('s_mov_b32 s73, 1')
    a.e('s_atomic_add s73, s[38:39], s%d' % off_s)

def gen_tl(a, al):
    a.label('tl_entry'); a.reset(); tr_init(a)
    t_voffs(a, 4, 1, 2, 3072); t_voffs(a, 8, 1, 2, 3584); t_voffs(a, 12, 1, 2, 1024); t_voffs(a, 16, 1, 2, 4096)
    KQ, KG, KA, KY = 60, 61, 62, 63
    rot_init(a, KQ, KG, KA, KY, 64)
    a.e('s_lshl_b32 s65, s%d, 7' % S_HG)
    a.e('s_lshl_b32 s66, s%d, 7' % S_FT)
    a.e('s_lshl_b32 s67, s%d, 7' % S_RT)
    a.e('s_waitcnt lgkmcnt(0)')
    srd(a, 44, 18, 512 * 3072); srd(a, 48, 24, 2048 * 3584); srd(a, 52, 20, 512 * 1024); srd(a, 56, 28, 1792 * 4096)
    def issue(b, blk):
        st, kind = b[:-1], b[-1]; k = int(st[1:]); ph = st[0]
        nt = ''
        if (ph == 'Q' and k == 0 and P.NTQ) or (ph == 'Q' and k == 7 and P.NTQL) or (ph == 'G' and k < 8 and P.NTG) or (ph == 'G' and k >= 24 and P.NTGL) or (ph == 'A' and k == 0 and P.NTY) or (ph == 'Y' and k < 7 and k >= P.PFJ and P.NTY): nt = 'nt '
        if ph == 'Q':
            if kind == 'q':
                a.e('s_mul_i32 s68, s%d, %d' % (KQ, 64 * 3072)); a.e('s_add_u32 s68, s68, s65')
            else:
                a.e('s_add_u32 s68, s68, 1024'); advance(a, KQ, 8)
            load_block(a, blk, 4, 4, 44, 68, 69, 32 * 3072, nt, b)
        else:
            kt, n, pitch, base, vo, sd = {'G': (KG, 32, 3584, 66, 8, 48), 'A': (KA, 8, 1024, 65, 12, 52), 'Y': (KY, 28, 4096, 67, 16, 56)}[ph]
            a.e('s_mul_i32 s68, s%d, %d' % (kt, 64 * pitch)); a.e('s_add_u32 s68, s68, s%d' % base); advance(a, kt, n)
            load_block(a, blk, vo, 4, sd, 68, 69, 32 * pitch, nt, b)
    def run(bars, plan):
        for (name, land, _) in bars:
            if land: a.wait(vm=tuple(tl_blocks(land)))
            tr_bar(a, name)
            for b, blk in plan[name]: issue(b, blk)
    pe = al.plan('T', 'E'); pm = al.plan('T', 'L'); ps = al.plan('T', 'S')
    bm = barriers(False); bs = barriers(True)
    im = [b[0] for b in bm].index('BS'); isp = [b[0] for b in bs].index('BS')
    for n in [b[0] for b in bm[im:]]: assert pm[n] == ps[n] == pe[n], (n, pm[n], ps[n])
    for n in G[2:]: assert pm[n] == pe[n]
    for b, blk in pm['init'][:2]: issue(b, blk)
    sv = list(a.vm)
    a.e('s_cmp_ge_u32 s%d, 28' % S_L); a.e('s_cbranch_scc1 tl_spare')
    a.e('s_xor_b32 s70, s%d, s%d' % (S_LH, S_X if P.XOR else 70 + 0) if P.XOR else 's_mov_b32 s70, s%d' % S_LH)
    a.e('s_and_b32 s70, s70, %d' % (1 if P.STAG else 0)); a.e('s_cmp_eq_u32 s70, 0'); a.e('s_cbranch_scc1 tl_late')
    for b, blk in pe['init'][2:]: issue(b, blk)
    run(bm[:10], pe)
    vm_e = list(a.vm)
    a.e('s_branch tl_g')
    a.label('tl_late'); a.vm = list(sv)
    for b, blk in pm['init'][2:]: issue(b, blk)
    run(bm[:10], pm)
    assert a.vm[len(a.vm) - len(vm_e):] == vm_e, (a.vm, vm_e)
    a.label('tl_g')
    run(bm[10:im], pm)
    vm_main = [t for t in a.vm if t and t[0] in 'AY']
    a.e('s_branch tl_p3')
    a.label('tl_spare'); a.vm = list(sv)
    for b, blk in ps['init'][2:]: issue(b, blk)
    run(bs[:isp], {n: [x for x in ps[n] if x[0][0] == 'Q'] for n in ps})
    a.e('v_lshlrev_b32 v20, 12, v1')
    a.e('s_lshr_b32 s70, s%d, 1' % S_X); a.e('s_lshl_b32 s70, s70, 10')
    a.e('s_mul_i32 s71, s%d, 7' % S_LL)
    if P.PFX:
        a.e('s_and_b32 s68, s%d, 1' % S_X); a.e('s_mul_i32 s68, s68, %d' % (7 - P.PFJ)); a.e('s_add_u32 s71, s71, s68')
    def pf(j, stl):
        a.e('s_add_u32 s68, s71, %d' % (j + (7 * stl + 1) // 2))
        a.e('s_sub_u32 s69, s68, 28'); a.e('s_cmp_ge_u32 s68, 28'); a.e('s_cselect_b32 s68, s69, s68')
        a.e('s_lshl_b32 s68, s68, 18'); a.e('s_add_u32 s68, s68, s70')
        a.e('buffer_load_dword v21, v20, s[56:59], s68 offen offset:%d %s' % (stl * 128, 'nt' if P.NTPF else ''), 'pf')
    n = 0
    for j in range(P.PFJ):
        for stl in range(8):
            if n >= P.PFQ: a.e('s_waitcnt vmcnt(%d)' % (P.PFQ - 1))
            pf(j, stl); n += 1
    for b, blk in ps['Q7']: issue(b, blk)
    vm_sp = [t for t in a.vm if t and t[0] in 'AY']
    assert vm_sp == vm_main
    a.label('tl_p3'); a.vm = list(vm_main)
    run(bm[im:], pm)
    tr_store(a, 0)
    a.e('s_endpgm')

def gen_fl(a, al):
    a.label('fl_entry'); a.reset(); tr_init(a)
    stamp_init(a); stamp(a, 0)
    t_voffs(a, 4, 1, 2, 3072)
    a.e('v_lshrrev_b32 v8, 3, v1'); a.e('v_lshlrev_b32 v8, 10, v8')
    a.e('v_lshrrev_b32 v2, 4, v1'); a.e('v_xor_b32 v2, v1, v2'); a.e('v_and_b32 v2, 7, v2'); a.e('v_lshl_add_u32 v8, v2, 4, v8')
    a.e('v_xor_b32 v9, 64, v8'); a.e('v_add_u32 v9, %d, v9' % 7168)
    a.e('v_add_u32 v10, %d, v8' % (2 * 7168)); a.e('v_add_u32 v11, %d, v9' % (2 * 7168))
    a.e('v_lshlrev_b32 v12, 4, v1')
    KQ, KG, KA, KY = 60, 61, 62, 63
    rot_init(a, KQ, KG, KA, KY, 64)
    a.e('s_lshl_b32 s65, s%d, 7' % S_HG); a.e('s_add_u32 s65, s65, 2048')
    a.e('s_lshl_b32 s66, s%d, 16' % S_RT)
    a.e('s_lshl_b32 s67, s%d, 18' % S_HG); a.e('s_add_u32 s67, s67, 0x%x' % WS_H)
    a.e('s_add_u32 s70, s66, 0x%x' % WS_O)
    a.e('s_mul_i32 s71, s%d, 229376' % S_HG); a.e('s_add_u32 s71, s71, 0x%x' % WS_U)
    a.e('s_lshl_b32 s76, s%d, 8' % S_RT); a.e('s_add_u32 s77, s76, 0x%x' % C_O); a.e('s_add_u32 s76, s76, 0x%x' % C_H)
    a.e('s_lshl_b32 s78, s%d, 8' % S_HG); a.e('s_add_u32 s72, s78, 0x%x' % C_U); a.e('s_add_u32 s78, s78, 0x%x' % C_KV)
    CH, CO, CKV, CU = 76, 77, 78, 72
    a.e('s_waitcnt lgkmcnt(0)')
    srd(a, 44, 18, 512 * 3072); srd(a, 48, 16, 2048 * 1024); srd(a, SRD_WS, 38, WS_SIZE); srd(a, 52, 36, 256)
    def issue(b, blk):
        st, kind = b[:-1], b[-1]; k = int(st[1:]); ph = st[0]
        if ph == 'Q':
            if kind == 'x':
                a.e('s_lshl_b32 s68, s%d, 7' % KQ); a.e('s_add_u32 s68, s68, s66')
                load_block(a, blk, 8, 4, 48, 68, 69, 32 * 1024, 'nt ' if ((P.NTX and k < 2) or (P.NTQL and k >= 6)) else '', b)
            else:
                a.e('s_mul_i32 s68, s%d, %d' % (KQ, 64 * 3072)); a.e('s_add_u32 s68, s68, s65'); advance(a, KQ, 8)
                load_block(a, blk, 4, 4, 44, 68, 69, 32 * 3072, 'nt ' if ((P.NTQ and k == 0) or (P.NTQL and k == 7)) else '', b)
        else:
            kt, n, base = {'G': (KG, 32, 67), 'A': (KA, 8, 70), 'Y': (KY, 28, 71)}[ph]
            a.e('s_lshl_b32 s68, s%d, 13' % kt); a.e('s_add_u32 s68, s68, s%d' % base); advance(a, kt, n)
            load_block(a, blk, 12, 1, SRD_WS, 68, 69, 4096, 'sc1 ', b)
    uid = [0]
    def hspin():
        a.e('s_mov_b32 s75, %d' % P.SPIN)
        a.label('fl_h')
        a.e('buffer_load_dword v14, v13, s[40:43], s64 offen sc1')
        a.e('s_waitcnt vmcnt(0)'); a.vm = []
        a.e('v_cmp_ne_u32 vcc, 32, v14')
        a.e('s_cmp_eq_u64 vcc, 0'); a.e('s_cbranch_scc1 fl_h_ok')
        a.e('s_sub_u32 s75, s75, 1'); a.e('s_cmp_lg_u32 s75, 0'); a.e('s_cbranch_scc1 fl_h')
        a.label('fl_h_ok')
    def poll(c): a.e('s_mov_b32 s74, 0'); a.e('s_atomic_add s74, s[38:39], s%d glc' % c)
    def run(bars, plan, var):
        for (name, land, _) in bars:
            if name == ('S1' if var == 'S' else 'G%d' % P.GB):
                spin_scalar(a, 'fl_kv' + var, CKV, 32, first_issued=(var != 'S'), sleep=(4 if var == 'S' else 0)); stamp(a, 3)
            if land: a.wait(vm=tuple(fl_blocks(land)))
            tr_bar(a, name)
            if name == 'Q7' and var == 'L': stamp(a, 1); hspin(); stamp(a, 2)
            if name == 'G%d' % P.BKV: signal(a, CKV)
            if name == 'G%d' % P.GA: poll(CKV)
            if name == 'BS': stamp(a, 4); spin_scalar(a, 'fl_o', CO, 8); stamp(a, 5)
            if name == 'A%d' % (P.AU - 3): poll(CU)
            if name == 'A%d' % P.AU: stamp(a, 6); spin_scalar(a, 'fl_u', CU, 28, first_issued=True); stamp(a, 7)
            for b, blk in plan[name]: issue(b, blk)
            if name == 'Q%d' % P.BHP:
                a.e('buffer_load_dword v14, v13, s[40:43], s64 offen sc1', 'hp')
    pe = al.plan('F', 'E'); pm = al.plan('F', 'L'); ps = al.plan('F', 'S')
    bm = barriers(False); bs = barriers(True)
    im = [b[0] for b in bm].index('BS'); isp = [b[0] for b in bs].index('BS')
    for n in [b[0] for b in bm[im:]]: assert pm[n] == ps[n], (n, pm[n], ps[n])
    for n in ['init'] + Q[:6]: assert pm[n] == ps[n] == pe[n]
    for n in G: assert pm[n] == pe[n]
    for b, blk in pm['init']: issue(b, blk)
    a.e('v_and_b32 v13, 31, v1'); a.e('v_lshlrev_b32 v13, 8, v13')
    a.e('s_mov_b32 s64, 0x%x' % C_H)
    run(bm[:6], pm, 'L')
    a.e('s_cmp_ge_u32 s%d, 28' % S_L); a.e('s_cbranch_scc1 fl_spare')
    sv = list(a.vm)
    assert P.BHP <= 3
    a.wait(vm=tuple(fl_blocks('Q6')))
    a.e('v_cmp_ne_u32 vcc, 32, v14')
    a.e('s_cmp_eq_u64 vcc, 0'); a.e('s_cbranch_scc0 fl_late')
    sv2 = list(a.vm)
    run(bm[6:8], pe, 'E')
    vm_e = list(a.vm)
    a.e('s_branch fl_g')
    a.label('fl_late'); a.vm = sv2
    run(bm[6:8], pm, 'L')
    assert a.vm == vm_e, (a.vm, vm_e)
    a.label('fl_g')
    run(bm[8:im], pm, 'L')
    a.e('s_branch fl_p3')
    a.label('fl_spare'); a.vm = sv
    run(bs[6:isp], ps, 'S')
    a.label('fl_p3'); a.vm = []
    run(bm[im:], pm, 'L')
    tr_store(a, 1)
    stamp_store(a, 2)
    a.e('s_endpgm')

def gen_compute(a, al):
    loc = al.loc
    MISC = (P.NT_POOL + P.NF_POOL) * 8192
    stamp_init(a); stamp(a, 0)
    if P.DBGT: a.e('s_memrealtime s[96:97]')
    W0, W1 = 11, 12
    a.e('s_and_b32 s11, s%d, 1' % S_W); a.e('s_lshr_b32 s12, s%d, 1' % S_W)
    a.e('s_lshl_b32 s13, s%d, 6' % S_RT); a.e('s_lshl_b32 s14, s%d, 3' % S_HG); a.e('s_add_u32 s13, s13, s14'); a.e('s_lshl_b32 s14, s%d, 1' % S_W); a.e('s_add_u32 s13, s13, s14')
    a.e('s_lshl_b32 s14, s13, 10')
    a.e('v_lshlrev_b32 v4, 4, v1')
    a.e('s_waitcnt lgkmcnt(0)')
    srd(a, 44, 16, 2048 * 1024); srd(a, 48, 32, 1024); srd(a, SRD_WS, 38, WS_SIZE)
    a.e('s_lshl_b32 s62, s%d, 2' % S_L); a.e('s_add_u32 s62, s62, s%d' % S_W)
    a.e('s_cmp_lg_u32 s62, 127'); a.e('s_cbranch_scc1 c_nozero')
    for r in range(4): a.e('v_mov_b32 v%d, 0' % (16 + r))
    a.e('s_mul_i32 s68, s%d, 4352' % S_X); a.e('s_add_u32 s68, s68, 0x%x' % WS_KV)
    for i in range(4): a.e('buffer_store_dwordx4 v[16:19], v4, s[40:43], s68 offen offset:%d sc1' % (i * 1024))
    a.e('s_add_u32 s68, s68, 4096')
    a.e('s_mov_b64 exec, 0xffff')
    a.e('buffer_store_dwordx4 v[16:19], v4, s[40:43], s68 offen sc1')
    a.e('s_mov_b64 exec, 0x3ff')
    a.e('v_lshlrev_b32 v13, 8, v1')
    a.e('s_mul_i32 s68, s%d, 2560' % S_X); a.e('s_add_u32 s68, s68, 0x%x' % WS_C)
    a.e('buffer_store_dword v16, v13, s[40:43], s68 offen sc1')
    a.e('s_mov_b64 exec, -1')
    a.e('s_nop 1')
    a.label('c_nozero'); a.reset()
    lnf = 'nt' if P.LNNT else ''
    a.e('buffer_load_dwordx4 v[200:203], v4, s[44:47], s14 offen %s' % lnf, 'ln')
    a.e('buffer_load_dwordx4 v[204:207], v4, s[44:47], s14 offen offset:1024 %s' % lnf, 'ln')
    a.e('buffer_load_dwordx4 v[208:211], v4, s[48:51], 0 offen', 'ln')
    a.e('s_getpc_b64 s[60:61]')
    a.label('k_pc')
    a.e('v_lshlrev_b32 v2, 7, v0')
    a.e('v_add_u32 v198, 0x8000, v2')
    a.e('v_min_u32 v2, k_end-k_pc-4, v2'); a.e('v_min_u32 v198, k_end-k_pc-4, v198')
    if P.CODEPF:
        a.e('global_load_dword v3, v2, s[60:61]', 'code')
        a.e('global_load_dword v3, v198, s[60:61]', 'code')
    srd(a, 52, 26, 3584); srd(a, 56, 30, 4096); srd(a, 44 + 20, 34, 2048 * 1024)
    if P.TLB:
        a.e('s_cmp_eq_u32 s%d, 0' % S_W); a.e('s_cselect_b32 s68, s24, s28'); a.e('s_cselect_b32 s69, s25, s29')
        a.e('s_mov_b32 s70, %d' % (2048 * 3584)); a.e('s_mov_b32 s71, 0x20000')
        a.e('s_cmp_eq_u32 s%d, 2' % S_W); a.e('s_cselect_b32 s68, s20, s68'); a.e('s_cselect_b32 s69, s21, s69'); a.e('s_cselect_b32 s70, %d, s70' % (512 * 1024))
        a.e('s_cmp_eq_u32 s%d, 3' % S_W); a.e('s_cselect_b32 s68, s34, s68'); a.e('s_cselect_b32 s69, s35, s69'); a.e('s_cselect_b32 s70, %d, s70' % (2048 * 1024))
        a.e('v_lshlrev_b32 v2, 20, v1')
        a.e('s_mov_b64 exec, 0xff')
        a.e('buffer_load_dword v3, v2, s[68:71], 0 offen', 'code')
        a.e('v_lshlrev_b32 v2, 21, v1'); a.e('v_and_b32 v198, 1, v1'); a.e('v_mul_u32_u24 v198, 0x18000, v198'); a.e('v_add_u32 v2, v2, v198')
        a.e('s_mov_b64 exec, 0xf')
        a.e('buffer_load_dword v3, v2, s[40:43], 0 offen', 'code')
        a.e('s_mov_b64 exec, -1')
    areg = {}; nxt = [236]
    def base_of(kind, blk):
        hi = (blk * 8192) >> 16
        return areg[(kind, hi)], blk * 8192 - (hi << 16)
    def mk_bases(kind, reg0, blks, regs):
        his = sorted({(b * 8192) >> 16 for b in blks})
        for h in his:
            r = regs.pop(0); areg[(kind, h)] = r
            a.e('v_add_u32 v%d, 0x%x, v%d' % (r, h << 16, reg0))
    AR = list(range(5, 20)) + list(range(236, 256))
    a.e('v_and_b32 v2, 31, v1'); a.e('s_lshl_b32 s15, s11, 5'); a.e('v_add_u32 v2, s15, v2')
    a.e('v_bfe_u32 v198, v2, 1, 3'); a.e('v_lshlrev_b32 v2, 7, v2'); a.e('v_lshrrev_b32 v199, 5, v1'); a.e('v_xor_b32 v198, v198, v199')
    for ks in range(4):
        a.e('v_xor_b32 v199, %d, v198' % (2 * ks)); a.e('v_lshl_add_u32 v199, v199, 4, v2')
        mk_bases('x%d' % ks, 199, [loc[s + 'x'] for s in Q], AR)
    tr_lane_addr(a, 199, 1, 198, 8, W1)
    mk_bases('tr8_1', 199, [loc[s + c] for s in Q for c in 'qkv'] + [loc[s + 'F'] for s in G], AR)
    tr_lane_addr(a, 199, 1, 198, 8, W0)
    mk_bases('tr8_0', 199, [loc[s + 'T'] for s in G], AR)
    tr_lane_addr(a, 199, 1, 198, 4, W0)
    mk_bases('tr4_0', 199, [loc[s + 'T'] for s in A], AR)
    tr_lane_addr(a, 199, 1, 198, 4, W1)
    mk_bases('tr4_1', 199, [loc[s + 'T'] for s in Y], AR)
    a.e('s_lshl_b32 s15, s12, 10'); a.e('v_add_u32 v199, s15, v4'); mk_bases('f_1', 199, [loc[s + 'F'] for s in A], AR)
    a.e('s_lshl_b32 s15, s11, 10'); a.e('v_add_u32 v199, s15, v4'); mk_bases('f_0', 199, [loc[s + 'F'] for s in Y], AR)
    AQ, AK, AV = 20, 36, 52
    for r in range(48): a.e('v_mov_b32 v%d, 0' % (AQ + r))
    a.wait(vm='ln')
    a.e('s_cmp_lg_u32 s62, 127'); a.e('s_cbranch_scc1 c_nozero2')
    a.e('s_mov_b32 s63, 1'); a.e('s_atomic_add s63, s[36:37], 0x0')
    a.label('c_nozero2')
    F = 212
    a.e('s_mov_b32 s15, 0x3f803f80')
    for r in range(4): a.e('v_mov_b32 v%d, 0' % (228 + r))
    for i in range(4):
        a.e('v_dot2_f32_bf16 v228, v%d, s15, v228' % (200 + i))
        a.e('v_dot2_f32_bf16 v229, v%d, s15, v229' % (204 + i))
        a.e('v_dot2_f32_bf16 v230, v%d, v%d, v230' % (200 + i, 208 + i))
        a.e('v_dot2_f32_bf16 v231, v%d, v%d, v231' % (204 + i, 208 + i))
    for i in range(8):
        a.e('v_lshlrev_b32 v%d, 16, v%d' % (F + 2 * i, 200 + i))
        a.e('v_and_b32 v%d, 0xffff0000, v%d' % (F + 2 * i + 1, 200 + i))
    dpp_reduce(a, [228, 229, 230, 231])
    a.e('v_mul_f32 v228, %s, v228' % f32(1 / 512)); a.e('v_mul_f32 v229, %s, v229' % f32(1 / 512))
    a.e('v_mul_f32 v230, %s, v230' % f32(-LOG2E)); a.e('v_mul_f32 v231, %s, v231' % f32(-LOG2E))
    a.e('v_readlane_b32 s68, v228, 63'); a.e('v_readlane_b32 s69, v229, 63')
    a.e('v_exp_f32 v230, v230'); a.e('v_exp_f32 v231, v231')
    for i in range(8): a.e('v_subrev_f32 v%d, s68, v%d' % (F + i, F + i))
    for i in range(8): a.e('v_subrev_f32 v%d, s69, v%d' % (F + 8 + i, F + 8 + i))
    a.e('v_add_f32 v230, 1.0, v230'); a.e('v_add_f32 v231, 1.0, v231')
    a.e('v_mul_f32 v228, v%d, v%d' % (F, F)); a.e('v_mul_f32 v229, v%d, v%d' % (F + 8, F + 8))
    for i in range(1, 8):
        a.e('v_fmac_f32 v228, v%d, v%d' % (F + i, F + i)); a.e('v_fmac_f32 v229, v%d, v%d' % (F + 8 + i, F + 8 + i))
    a.e('v_rcp_f32 v232, v230'); a.e('v_rcp_f32 v234, v231')
    dpp_reduce(a, [228, 229])
    a.e('v_sub_f32 v233, 1.0, v232'); a.e('v_sub_f32 v235, 1.0, v234')
    a.e('v_mov_b32 v230, %s' % f32(1e-5)); a.e('v_fmac_f32 v230, %s, v228' % f32(1 / 512))
    a.e('v_mov_b32 v231, %s' % f32(1e-5)); a.e('v_fmac_f32 v231, %s, v229' % f32(1 / 512))
    a.e('v_rsq_f32 v230, v230'); a.e('v_rsq_f32 v231, v231')
    a.e('s_nop 0')
    a.e('v_readlane_b32 s68, v230, 63'); a.e('v_readlane_b32 s69, v231, 63')
    for i in range(8): a.e('v_mul_f32 v%d, s68, v%d' % (F + i, F + i))
    for i in range(8): a.e('v_mul_f32 v%d, s69, v%d' % (F + 8 + i, F + 8 + i))
    for i in range(8): a.e('v_cvt_pk_bf16_f32 v%d, v%d, v%d' % (200 + i, F + 2 * i, F + 2 * i + 1))
    a.e('v_lshrrev_b32 v2, 3, v1'); a.e('v_lshlrev_b32 v2, 18, v2')
    a.e('s_lshl_b32 s15, s11, 2'); a.e('v_xor_b32 v198, s15, v1'); a.e('v_and_b32 v198, 7, v198'); a.e('v_lshl_add_u32 v2, v198, 4, v2')
    a.e('s_lshl_b32 s15, s13, 7'); a.e('s_add_u32 s15, s15, 0x%x' % WS_H)
    a.e('buffer_store_dwordx4 v[200:203], v2, s[40:43], s15 offen sc1', 'sth')
    a.e('buffer_store_dwordx4 v[204:207], v2, s[40:43], s15 offen offset:128 sc1', 'sth')
    a.e('s_lshl_b32 s15, s13, 3'); a.e('s_add_u32 s15, s15, 0x%x' % WS_G)
    a.e('v_mov_b32 v198, 0')
    a.e('s_mov_b32 exec_lo, 0'); a.e('s_mov_b32 exec_hi, 0x80000000')
    a.e('buffer_store_dwordx4 v[232:235], v198, s[40:43], s15 offen sc1', 'sth')
    a.e('s_mov_b64 exec, -1')
    a.e('v_lshrrev_b32 v2, 5, v1'); a.e('v_lshlrev_b32 v2, 3, v2')
    a.e('s_lshl_b32 s15, s11, 6'); a.e('s_lshl_b32 s68, s%d, 7' % S_FT); a.e('s_add_u32 s15, s15, s68')
    for i in range(4): a.e('buffer_load_dwordx2 %s, v2, s[52:55], s15 offen offset:%d' % (vr(212 + 2 * i, 2), 16 * i), 'bias')
    a.e('v_and_b32 v2, 31, v1'); a.e('s_lshl_b32 s15, s%d, 6' % S_RT); a.e('s_lshl_b32 s68, s12, 5'); a.e('s_add_u32 s15, s15, s68')
    a.e('v_add_u32 v220, s15, v2')
    a.e('v_lshlrev_b32 v2, 1, v220')
    a.e('buffer_load_ushort v221, v2, s[56:59], 0 offen', 'bias')
    srd(a, 68, 36, 256)
    a.e('v_mov_b32 v198, 0')
    a.e('buffer_load_dword v199, v198, s[68:71], 0 offen sc1', 'zl')
    def lds_signal(word, off, lab, vm='all'):
        a.e('v_mov_b32 v2, %d' % (MISC + 4 * word)); a.e('v_mov_b32 v3, 1')
        a.wait(vm=vm)
        a.e('s_mov_b64 exec, 1'); a.e('ds_add_rtn_u32 v3, v2, v3'); a.e('s_mov_b64 exec, -1')
        a.wait(lg='all')
        a.e('v_readfirstlane_b32 s15, v3')
        a.e('s_cmp_lg_u32 s15, 3'); a.e('s_cbranch_scc1 %s' % lab)
        a.e('s_mov_b32 s15, 1'); a.e('s_atomic_add s15, s[38:39], s%d' % off)
        a.label(lab)
    def h_signal(early):
        lab = 'c_hs%d' % early
        a.e('s_cmp_lg_u32 s62, %d' % early); a.e('s_cbranch_scc1 %s' % lab)
        a.e('s_waitcnt vmcnt(0)')
        a.e('s_mov_b32 s75, %d' % P.SPIN)
        a.label(lab + '_z')
        a.e('v_readfirstlane_b32 s74, v199')
        a.e('s_cmp_eq_u32 s74, 8'); a.e('s_cbranch_scc1 %s_zok' % lab)
        a.e('buffer_load_dword v199, v198, s[68:71], 0 offen sc1'); a.vm.pop()
        a.e('s_waitcnt vmcnt(0)')
        a.e('s_sub_u32 s75, s75, 1'); a.e('s_cmp_lg_u32 s75, 0'); a.e('s_cbranch_scc1 %s_z' % lab)
        a.label(lab + '_zok')
        if early:
            a.e('s_mov_b32 s15, 1'); a.e('s_atomic_add s15, s[38:39], s63')
        else:
            a.e('v_mov_b32 v3, 1'); a.e('s_mov_b64 exec, 1')
            a.e('buffer_atomic_add v3, v198, s[40:43], s63 offen sc1')
            a.e('s_mov_b64 exec, -1')
            a.vm = a.vm[-1:]
        a.label(lab)
    a.e('s_xor_b32 s62, s%d, s%d' % (S_LH, S_X) if P.XOR else 's_mov_b32 s62, s%d' % S_LH)
    a.e('s_and_b32 s62, s62, %d' % (1 if P.STAG else 0)); a.e('s_cmp_ge_u32 s%d, 28' % S_L); a.e('s_cselect_b32 s62, 0, s62')
    a.e('v_mov_b32 v2, %d' % MISC); a.e('ds_write_b128 v2, v[20:23]')
    a.e('s_lshl_b32 s63, s%d, 8' % S_RT); a.e('s_add_u32 s63, s63, 0x%x' % C_H)
    stamp(a, 1, 0)
    FR = 68
    ACC, ACA, ACY = 196, 36, 52
    extra = []
    def reads(st, par):
        ph = st[0]; ops = []
        if ph == 'Q':
            fb = FR + par * 64
            for ks in range(4):
                b = fb + ks * 16
                v, o = base_of('x%d' % ks, loc[st + 'x'])
                ops.append(lambda b=b, v=v, o=o: a.e('ds_read_b128 %s, v%d offset:%d' % (vr(b, 4), v, o), st))
                for g, c in enumerate('qkv'):
                    v, o = base_of('tr8_1', loc[st + c])
                    for t in range(2):
                        ops.append(lambda b=b, v=v, o=o, g=g, t=t, ks=ks: a.e('ds_read_b64_tr_b16 %s, v%d offset:%d' % (vr(b + 4 + 4 * g + 2 * t, 2), v, o + ks * 2048 + t * 512), st))
        elif ph == 'G':
            fb = FR + par * 32
            for ks in range(4):
                for op, (kind, c) in enumerate((('tr8_0', 'T'), ('tr8_1', 'F'))):
                    v, o = base_of(kind, loc[st + c])
                    for t in range(2):
                        ops.append(lambda v=v, o=o, op=op, t=t, ks=ks: a.e('ds_read_b64_tr_b16 %s, v%d offset:%d' % (vr(fb + ks * 8 + op * 4 + 2 * t, 2), v, o + ks * 2048 + t * 512), st))
        else:
            fb = FR + par * 32
            tv, to = base_of('tr4_0' if ph == 'A' else 'tr4_1', loc[st + 'T'])
            fv, fo = base_of('f_1' if ph == 'A' else 'f_0', loc[st + 'F'])
            for ks in range(4):
                for t in range(2):
                    ops.append(lambda t=t, ks=ks: a.e('ds_read_b64_tr_b16 %s, v%d offset:%d' % (vr(fb + ks * 8 + 2 * t, 2), tv, to + ks * 2048 + t * 1024), st))
                ops.append(lambda ks=ks: a.e('ds_read_b128 %s, v%d offset:%d' % (vr(fb + ks * 8 + 4, 4), fv, fo + ks * 2048), st))
        return ops
    def mf(d, x, y): return lambda: a.e('v_mfma_f32_32x32x16_bf16 %s, %s, %s, %s' % (vr(d, 16), vr(x, 4), vr(y, 4), vr(d, 16)))
    def mfmas(st, par):
        ph = st[0]; ops = []
        for ks in range(4):
            if ph == 'Q':
                b = FR + par * 64 + ks * 16
                ops += [mf(AQ, b + 4, b), mf(AK, b, b + 8), mf(AV, b, b + 12)]
            else:
                b = FR + par * 32 + ks * 8
                ops.append({'G': mf(ACC, b, b + 4), 'A': mf(ACA, b, b + 4), 'Y': mf(ACY, b + 4, b)}[ph])
        return ops
    def phase(sts, pre={}, post={}):
        if sts[0] in pre: pre[sts[0]]()
        a.e('s_barrier')
        if sts[0] in post: post[sts[0]]()
        for f in reads(sts[0], 0): f()
        for i, st in enumerate(sts):
            nx = sts[i + 1] if i + 1 < len(sts) else None
            if nx in pre: pre[nx]()
            a.wait(lg='all')
            if nx:
                a.e('s_barrier')
                if nx in post: post[nx]()
                alt = {1: {'G1': 1, 'G4': 2, 'G8': 3, 'G12': 4, 'G20': 5, 'G31': 6}, 2: {'A1': 1, 'A7': 2, 'Y0': 3, 'Y4': 4, 'Y10': 5, 'Y20': 6}, 3: {'Q1': 1, 'Q2': 2, 'Q3': 3, 'Q4': 4, 'Q5': 5, 'Q7': 6}}
                if P.TSSET in alt and nx in alt[P.TSSET]: stamp(a, alt[P.TSSET][nx])
            ex = []
            while extra and len(ex) < P.SL:
                f = extra.pop(0)
                if isinstance(f, str): break
                ex.append(f)
            m = mfmas(st, i & 1); h = len(m) // 2
            rd = reads(nx, (i + 1) & 1) if nx else []
            nv = len(ex) // 2 if rd else 0
            spread(m[:h], mix(rd, ex[:nv])); spread(m[h:], ex[nv:])
    assert P.BH <= 1
    for i in range(8):
        extra.append(lambda i=i: a.e('v_lshlrev_b32 v%d, 16, v%d' % (ACC + 2 * i, 212 + i)))
        extra.append(lambda i=i: a.e('v_and_b32 v%d, 0xffff0000, v%d' % (ACC + 2 * i + 1, 212 + i)))
    phase(Q, pre={'Q1': lambda: (h_signal(1), h_signal(0))}, post={'Q0': lambda: stamp(a, 2, 0)})
    stamp(a, 3, 0)
    epi = []
    def X(t, tag=None): epi.append(lambda: a.e(t, tag))
    X('s_mov_b32 s68, %s' % f32(LOG2E)); X('s_mov_b32 s69, %s' % f32(1e-6))
    def phi(acc, out, TM):
        for r in range(16): X('v_mul_f32 v%d, s68, v%d' % (TM + r, acc + r))
        for r in range(16): X('v_exp_f32_e64 v%d, v%d clamp' % (TM + r, TM + r))
        for r in range(16): X('v_max_f32 v%d, 0, v%d' % (acc + r, acc + r))
        for r in range(16): X('v_add_f32 v%d, v%d, v%d' % (acc + r, acc + r, TM + r))
        for r in range(16): X('v_add_f32 v%d, s69, v%d' % (acc + r, acc + r))
        for r in range(8): X('v_cvt_pk_bf16_f32 v%d, v%d, v%d' % (out + r, acc + 2 * r, acc + 2 * r + 1))
    PK, PV, ONE, DKV, DZ, PQ = 140, 148, 156, 160, 176, 224
    phi(AK, PK, 160)
    for r in range(8): X('v_cvt_pk_bf16_f32 v%d, v%d, v%d' % (PV + r, AV + 2 * r, AV + 2 * r + 1))
    for r in range(4): X('v_mov_b32 v%d, 0x3f803f80' % (ONE + r))
    X('v_mfma_f32_32x32x16_bf16 %s, %s, %s, 0' % (vr(DKV, 16), vr(PV, 4), vr(PK, 4)))
    X('v_mfma_f32_32x32x16_bf16 %s, %s, %s, 0' % (vr(DZ, 16), vr(ONE, 4), vr(PK, 4)))
    X('v_mfma_f32_32x32x16_bf16 %s, %s, %s, %s' % (vr(DKV, 16), vr(PV + 4, 4), vr(PK + 4, 4), vr(DKV, 16)))
    X('v_mfma_f32_32x32x16_bf16 %s, %s, %s, %s' % (vr(DZ, 16), vr(ONE, 4), vr(PK + 4, 4), vr(DZ, 16)))
    X('v_bfe_u32 v2, v1, 4, 1'); X('v_cmp_ne_u32 vcc, 0, v2')
    X('v_mul_u32_u24 v2, 1088, v2'); X('v_and_b32 v3, 15, v1'); X('v_lshl_add_u32 v2, v3, 2, v2')
    X('v_lshrrev_b32 v3, 5, v1'); X('v_lshl_add_u32 v3, v3, 8, v2')
    X('s_lshl_b32 s70, s%d, 2' % S_HG); X('s_lshl_b32 s71, s12, 1'); X('s_add_u32 s70, s70, s71')
    X('s_mul_i32 s71, s70, 1088'); X('s_add_u32 s71, s71, 0x%x' % WS_KV)
    for r in range(8): X('v_cndmask_b32 v%d, v%d, v%d, vcc' % (DKV + r, DKV + r, DKV + 8 + r))
    def atomics():
        for r in range(8):
            a.e('buffer_atomic_add_f32 v%d, v3, s[40:43], s71 offen offset:%d' % (DKV + r, (8 * (r >> 2) + (r & 3)) * 64), 'kva')
        a.e('s_mov_b32 exec_hi, 0'); a.e('buffer_atomic_add_f32 v%d, v2, s[40:43], s71 offen offset:1024' % DZ, 'kva'); a.e('s_mov_b64 exec, -1')
    uid = [0]
    if P.PRERED:
        X('s_mul_i32 s73, s12, 3072'); X('s_add_u32 s73, s73, %d' % (MISC + 256)); X('v_add_u32 v192, s73, v4')
        def wr():
            lab = 'c_pr%d' % uid[0]; uid[0] += 1
            a.e('s_cmp_eq_u32 s11, 0'); a.e('s_cbranch_scc1 %s' % lab)
            a.e('ds_write_b128 v192, %s' % vr(DKV, 4)); a.e('ds_write_b128 v192, %s offset:1024' % vr(DKV + 4, 4)); a.e('ds_write_b32 v192, v%d offset:2048' % DZ)
            a.label(lab)
        epi.append(wr); epi.append('BAR')
        def rd():
            a.e('ds_read_b128 %s, v192' % vr(DKV + 8, 4)); a.e('ds_read_b128 %s, v192 offset:1024' % vr(DKV + 12, 4)); a.e('ds_read_b32 v%d, v192 offset:2048' % (DZ + 1))
        epi.append(rd); epi.append('LGKM')
        for r in range(8): X('v_add_f32 v%d, v%d, v%d' % (DKV + r, DKV + r, DKV + 8 + r))
        X('v_add_f32 v%d, v%d, v%d' % (DZ, DZ, DZ + 1))
        def at():
            lab = 'c_pr%d' % uid[0]; uid[0] += 1
            a.e('s_cmp_lg_u32 s11, 0'); a.e('s_cbranch_scc1 %s' % lab)
            atomics()
            a.label(lab)
        epi.append(at)
    else:
        epi.append(atomics)
    phi(AQ, PQ, 140)
    X('v_and_b32 v2, 31, v1'); X('v_min_u32 v2, 16, v2'); X('v_lshlrev_b32 v2, 6, v2')
    X('v_lshrrev_b32 v3, 5, v1'); X('v_lshl_add_u32 v222, v3, 4, v2')
    X('s_lshl_b32 s72, s%d, 16' % S_RT); X('s_lshl_b32 s73, s70, 11'); X('s_add_u32 s72, s72, s73')
    X('s_lshl_b32 s73, s11, 10'); X('s_add_u32 s72, s72, s73'); X('s_add_u32 s72, s72, 0x%x' % WS_O)
    KL = 140
    def kv_loads():
        for h in range(2):
            for j in range(2):
                a.e('buffer_load_dwordx4 %s, v222, s[40:43], s71 offen offset:%d sc1' % (vr(KL + 8 * h + 4 * j, 4), h * 1088 + j * 32), 'kvl')
    def o_step():
        a.wait(vm='kvl')
        for j in range(8): a.e('v_cvt_pk_bf16_f32 v%d, v%d, v%d' % (156 + j, KL + 2 * j, KL + 2 * j + 1))
        for h in range(2):
            a.e('v_mfma_f32_32x32x16_bf16 %s, %s, %s, 0' % (vr(164 + 16 * h, 16), vr(156 + 4 * h, 4), vr(PQ + 4 * h, 4)))
        for h in range(2):
            d = 164 + 16 * h
            a.e('v_add_f32 v%d, s69, v%d' % (d + 8, d + 8)); a.e('v_rcp_f32 v%d, v%d' % (d + 8, d + 8))
            for j in range(8): a.e('v_mul_f32 v%d, v%d, v%d' % (d + j, d + j, d + 8))
            for j in range(4): a.e('v_cvt_pk_bf16_f32 v%d, v%d, v%d' % (KL + 4 * h + j, d + 2 * j, d + 2 * j + 1))
            a.e('buffer_store_dwordx4 %s, v4, s[40:43], s72 offen offset:%d sc1' % (vr(KL + 4 * h, 4), h * 2048), 'sto')
    X('v_lshlrev_b32 v221, 16, v221')
    for r in range(16): X('v_mov_b32 v%d, 0' % (ACA + r))
    for r in range(16): X('v_mov_b32 v%d, v221' % (ACY + r))
    stamp(a, 4, 0)
    a.e('s_cmp_ge_u32 s%d, 28' % S_L); a.e('s_cbranch_scc1 c_spare')
    sv = list(a.vm)
    wall = lambda: a.wait(vm='all')
    extra.extend(epi)
    def chk_kva(): assert 'kva' in a.vm and a.vm.count('kva') == 9, a.vm; a.wait(vm='all')
    def chk_done(): assert not extra, len(extra); kv_loads()
    phase(G, pre={'G%d' % P.BKV: chk_kva}, post={'G%d' % P.GB: chk_done, 'G%d' % P.GC: o_step})
    assert not extra
    stamp(a, 5, 0)
    c = math.sqrt(2 / math.pi); k0 = -2 * c * LOG2E; k1_ = k0 * 0.044715
    a.e('s_mov_b32 s68, %s' % f32(k1_)); a.e('v_mov_b32 v3, %s' % f32(k0))
    T = 164
    for r in range(16): a.e('v_mul_f32 v%d, v%d, v%d' % (T + r, ACC + r, ACC + r))
    for r in range(16): a.e('v_fma_f32 v%d, v%d, s68, v3' % (T + r, T + r))
    for r in range(16): a.e('v_mul_f32 v%d, v%d, v%d' % (T + r, T + r, ACC + r))
    for r in range(16): a.e('v_exp_f32 v%d, v%d' % (T + r, T + r))
    for r in range(16): a.e('v_add_f32 v%d, 1.0, v%d' % (T + r, T + r))
    for r in range(16): a.e('v_rcp_f32 v%d, v%d' % (T + r, T + r))
    for r in range(16): a.e('v_mul_f32 v%d, v%d, v%d' % (T + r, T + r, ACC + r))
    for r in range(8): a.e('v_cvt_pk_bf16_f32 v%d, v%d, v%d' % (148 + r, T + 2 * r, T + 2 * r + 1))
    a.e('s_mul_i32 s15, s%d, 229376' % S_HG); a.e('s_lshl_b32 s68, s%d, 13' % S_FT); a.e('s_add_u32 s15, s15, s68')
    a.e('s_lshl_b32 s68, s11, 12'); a.e('s_add_u32 s15, s15, s68'); a.e('s_lshl_b32 s68, s12, 10'); a.e('s_add_u32 s15, s15, s68')
    a.e('s_add_u32 s15, s15, 0x%x' % WS_U)
    a.e('buffer_store_dwordx4 v[148:151], v4, s[40:43], s15 offen sc1')
    a.e('buffer_store_dwordx4 v[152:155], v4, s[40:43], s15 offen offset:2048 sc1')
    a.e('s_barrier')
    a.e('s_lshl_b32 s68, s%d, 8' % S_RT); a.e('s_add_u32 s68, s68, 0x%x' % C_O)
    lds_signal(2, 68, 'c_os', vm='sto')
    a.e('s_lshl_b32 s68, s%d, 8' % S_HG); a.e('s_add_u32 s68, s68, 0x%x' % C_U)
    lds_signal(1, 68, 'c_us')
    a.e('s_branch c_p3')
    a.label('c_spare'); a.vm = sv
    a.e('s_nop 7'); a.e('s_nop 3')
    for f in epi:
        if f == 'BAR': a.wait(lg='all'); a.e('s_barrier')
        elif f == 'LGKM': a.wait(lg='all')
        else: f()
    a.e('s_lshl_b32 s68, s%d, 8' % S_HG); a.e('s_add_u32 s68, s68, 0x%x' % C_KV)
    lds_signal(0, 68, 'c_sp1')
    spin_scalar(a, 'c_kv', 68, 32, sleep=8)
    kv_loads(); o_step()
    a.e('s_lshl_b32 s68, s%d, 8' % S_RT); a.e('s_add_u32 s68, s68, 0x%x' % C_O)
    lds_signal(2, 68, 'c_sp2')
    a.e('s_barrier')
    a.label('c_p3'); a.reset()
    stamp(a, 6, 0)
    def g_load():
        a.e('v_lshlrev_b32 v2, 3, v220'); a.e('s_mov_b32 s15, 0x%x' % WS_G)
        a.e('buffer_load_dwordx2 v[222:223], v2, s[40:43], s15 offen sc1', 'g')
    phase(A + Y, post={'A1': g_load})
    a.wait(vm='g')
    for r in range(16): a.e('v_mul_f32 v%d, v222, v%d' % (ACA + r, ACA + r))
    for r in range(16): a.e('v_fmac_f32 v%d, v223, v%d' % (ACA + r, ACY + r))
    for r in range(8): a.e('v_cvt_pk_bf16_f32 v%d, v%d, v%d' % (140 + r, ACA + 2 * r, ACA + 2 * r + 1))
    for k in (0, 2):
        a.e('v_permlane32_swap_b32 v%d, v%d' % (140 + 2 * k, 142 + 2 * k))
        a.e('v_permlane32_swap_b32 v%d, v%d' % (141 + 2 * k, 143 + 2 * k))
    a.e('v_lshlrev_b32 v2, 10, v220'); a.e('v_lshrrev_b32 v3, 5, v1'); a.e('v_lshl_add_u32 v2, v3, 4, v2')
    a.e('s_lshl_b32 s15, s%d, 7' % S_HG); a.e('s_lshl_b32 s68, s11, 6'); a.e('s_add_u32 s15, s15, s68')
    a.e('buffer_store_dwordx4 v[140:143], v2, s[64:67], s15 offen')
    a.e('buffer_store_dwordx4 v[144:147], v2, s[64:67], s15 offen offset:32')
    if P.DBGT:
        a.e('s_waitcnt vmcnt(0)'); a.e('s_memrealtime s[94:95]'); a.e('s_waitcnt lgkmcnt(0)')
        a.e('s_not_b32 s96, s96')
        a.e('s_atomic_umax s96, s[36:37], 0x10'); a.e('s_atomic_umax s94, s[36:37], 0x14')
        a.e('s_not_b32 s97, s96'); a.e('s_atomic_umax s97, s[36:37], 0x18')
        a.e('s_atomic_umax s98, s[36:37], 0x1c'); a.e('s_atomic_umax s100, s[36:37], 0x20')
    if P.TS:
        a.e('s_waitcnt vmcnt(0)'); stamp(a, 7)
        a.e('s_cmp_lg_u32 s%d, 0' % S_W); a.e('s_cbranch_scc1 c_end')
        stamp_store(a, 0)
        a.label('c_end')
    a.e('s_endpgm')

def gen(out):
    a = Asm()
    kn = NAME + '_kernel'
    a.raw('.globl %s\n.p2align 8\n.type %s,@function' % (kn, kn))
    a.label(kn)
    a.e('s_cmp_ge_u32 s2, 256'); a.e('s_cbranch_scc0 k_go'); a.e('s_endpgm')
    a.label('k_go')
    a.e('s_load_dwordx16 s[16:31], s[0:1], 0')
    a.e('s_load_dwordx8 s[32:39], s[0:1], 64')
    a.e('v_and_b32 v1, 63, v0'); a.e('v_lshrrev_b32 v2, 6, v0')
    a.e('v_readfirstlane_b32 s%d, v2' % S_W)
    a.e('s_and_b32 s%d, s2, 7' % S_X); a.e('s_lshr_b32 s%d, s2, 3' % S_L)
    a.e('s_and_b32 s%d, s%d, 3' % (S_LL, S_L)); a.e('s_lshr_b32 s%d, s%d, 2' % (S_LH, S_L))
    a.e('s_lshr_b32 s11, s%d, 1' % S_X)
    a.e('s_lshl_b32 s%d, s11, 3' % S_RT); a.e('s_add_u32 s%d, s%d, s%d' % (S_RT, S_RT, S_LH))
    a.e('s_mul_i32 s%d, s11, 7' % S_FT); a.e('s_add_u32 s%d, s%d, s%d' % (S_FT, S_FT, S_LH))
    a.e('s_and_b32 s11, s%d, 1' % S_X); a.e('s_lshl_b32 s%d, s11, 2' % S_HG); a.e('s_add_u32 s%d, s%d, s%d' % (S_HG, S_HG, S_LL))
    a.e('s_cmp_eq_u32 s%d, 4' % S_W); a.e('s_cbranch_scc1 tl_entry')
    a.e('s_cmp_eq_u32 s%d, 5' % S_W); a.e('s_cbranch_scc1 fl_entry')
    al = Alloc()
    al.plan('T', 'E'); al.plan('F', 'E')
    gen_compute(a, al); gen_tl(a, al); gen_fl(a, al)
    a.label('k_end')
    lds = (P.NT_POOL + P.NF_POOL) * 8192 + 256 + 6144
    hdr = '; generated by gen/gen2.py\n; @launch grid=(256,1,1) block=(384,1,1) lds=%d\n' % lds
    s = hdr + '.amdgcn_target "amdgcn-amd-amdhsa--gfx950"\n.text\n' + a.text()
    s += '''.section .rodata,"a"
.p2align 6
.amdhsa_kernel %s
  .amdhsa_next_free_vgpr 256
  .amdhsa_next_free_sgpr 102
  .amdhsa_accum_offset 256
  .amdhsa_group_segment_fixed_size 0
  .amdhsa_kernarg_size 96
  .amdhsa_user_sgpr_count 2
  .amdhsa_user_sgpr_kernarg_segment_ptr 1
  .amdhsa_system_sgpr_workgroup_id_x 1
.end_amdhsa_kernel
''' % kn
    open(out, 'w').write(s)
    return al

if __name__ == '__main__':
    out = 'cdna_kernels/%s.s' % NAME
    for arg in sys.argv[1:]:
        if arg == '--ts': P.TS = True
        elif '=' in arg:
            k, v = arg.split('='); setattr(P, k, int(v))
        else: out = arg
    al = gen(out)
```

```python
import sys, math
from asmlib import *
import gen2
from gen2 import srd, tr_lane_addr, NAME, TSOFF
class B: NL = 2; LA = 3; COMP = 1; SC1 = 1; FRONT = 2; NS = 32; R = 8; ROT = 1; PRIO = 0; NODMA = 0; NOMF = 0; NORD = 0; B128 = 0; HALF = 0; M16 = 0; W2 = 0; MAP = 0; NV = 0; VM = 0; EXPF = 4; NACC = 1; DEEP = 0; NOF = 0; COFF = 0
def gen(out):
    PITCH = 4096 if B.W2 else 3584
    if B.W2: B.NS = 28
    a = Asm(); kn = NAME + '_kernel'
    a.raw('.globl %s\n.p2align 8\n.type %s,@function' % (kn, kn)); a.label(kn)
    a.e('s_lshr_b32 s5, s2, 3'); a.e('s_cmp_ge_u32 s5, %d' % (32 if B.W2 else 28)); a.e('s_cbranch_scc0 k_go'); a.e('s_endpgm'); a.label('k_go')
    a.e('s_load_dwordx16 s[16:31], s[0:1], 0'); a.e('s_load_dwordx8 s[32:39], s[0:1], 64')
    a.e('s_memrealtime s[80:81]')
    a.e('v_and_b32 v1, 63, v0'); a.e('v_lshrrev_b32 v2, 6, v0'); a.e('v_readfirstlane_b32 s3, v2')
    a.e('s_and_b32 s4, s2, 7'); a.e('s_and_b32 s9, s5, 3'); a.e('s_lshr_b32 s10, s5, 2')
    a.e('s_lshr_b32 s11, s4, 1'); a.e('s_mul_i32 s8, s11, %d' % (8 if B.W2 else 7)); a.e('s_add_u32 s8, s8, s10')
    if B.MAP: a.e('s_lshl_b32 s8, s10, 2'); a.e('s_add_u32 s8, s8, s11')
    a.e('s_and_b32 s11, s4, 1'); a.e('s_lshl_b32 s7, s11, 2'); a.e('s_add_u32 s7, s7, s9')
    a.e('s_mul_i32 s61, s9, %d' % (6 if B.W2 else 8)); a.e('s_mul_i32 s64, s10, %d' % (1 if B.W2 else 5)); a.e('s_add_u32 s61, s61, s64'); a.e('s_and_b32 s61, s61, %d' % (31 if B.ROT else 0))
    nl = B.NL if B.NL else 4
    per = 16 // nl
    a.e('s_sub_u32 s12, s3, %d' % (4 if B.NL else 0))
    a.e('v_lshrrev_b32 v4, 3, v1'); a.e('v_mul_u32_u24 v4, %d, v4' % PITCH); a.e('v_bfe_u32 v2, v1, 4, 1'); a.e('v_lshlrev_b32 v2, 2, v2')
    a.e('v_xor_b32 v2, v1, v2'); a.e('v_and_b32 v2, 7, v2'); a.e('v_lshl_add_u32 v4, v2, 4, v4')
    a.e('v_lshlrev_b32 v12, 4, v1')
    a.e('s_waitcnt lgkmcnt(0)')
    srd(a, 48, 28 if B.W2 else 24, 2048 * 3584); srd(a, 40, 38, 0x1000000)
    a.e('s_lshl_b32 s66, s8, 7'); a.e('s_lshl_b32 s67, s7, 18')
    sc = 'sc1 ' if B.SC1 else ''
    h = per // 2
    a.e('s_mul_i32 s13, s12, %d' % (h * 8 * PITCH)); a.e('s_add_u32 s66, s66, s13')
    a.e('s_mul_i32 s13, s12, %d' % (h * 1024)); a.e('s_add_u32 s67, s67, s13')
    for i in range(1, min(h, 4)): a.e('v_add_u32 v%d, %d, v4' % (4 + i, i * (8 * PITCH - 1024)))
    def dma(st):
        sb = (st % B.R) * 16384; tg = 'st%d' % st; ops = []
        if B.NODMA and st >= 3: return []
        def pre():
            a.e('s_mul_i32 s68, s61, %d' % (64 * PITCH)); a.e('s_add_u32 s68, s68, s66')
            a.e('s_lshl_b32 s70, s61, 13'); a.e('s_add_u32 s70, s70, s67')
            a.e('s_add_u32 s61, s61, 1'); a.e('s_cmp_eq_u32 s61, %d' % B.NS); a.e('s_cselect_b32 s61, 0, s61')
        for i in range(h):
            def f(i=i):
                if i == 0: pre(); a.e('s_add_u32 m0, s13, %d' % sb)
                if i == 4: a.e('s_add_u32 m0, s13, %d' % (sb + 4096)); a.e('s_add_u32 s68, s68, %d' % (32 * PITCH))
                a.e('buffer_load_dwordx4 v%d, s[48:51], s68 offen offset:%d lds' % (4 + i % 4, (i % 4) * 1024), tg)
            ops.append(f)
        for i in range(0 if B.NOF else h):
            def f(i=i):
                if i == 0: a.e('s_add_u32 m0, s13, %d' % (sb + 8192))
                if i == 4: a.e('s_add_u32 m0, s13, %d' % (sb + 8192 + 4096)); a.e('s_add_u32 s70, s70, 4096')
                a.e('buffer_load_dwordx4 v12, s[40:43], s70 offen offset:%d %slds' % ((i % 4) * 1024, sc), tg)
            ops.append(f)
        return ops
    if B.NL:
        a.e('s_cmp_ge_u32 s3, 4'); a.e('s_cbranch_scc1 loader')
    a.e('s_and_b32 s14, s3, 1'); a.e('s_lshr_b32 s15, s3, 1')
    tr_lane_addr(a, 8, 1, 2, 8, 14); a.e('v_add_u32 v9, 0x10000, v8')
    tr_lane_addr(a, 10, 1, 2, 8, 15); a.e('v_add_u32 v11, 0x10000, v10')
    a.e('s_lshl_b32 s62, s14, 10'); a.e('v_add_u32 v13, s62, v12'); a.e('v_add_u32 v14, 0x10000, v13')
    for r in list(range(16, 48)) + list(range(112, 160)): a.e('v_mov_b32 v%d, 0' % r)
    FR = 48
    FRS = lambda st: ([48, 80, 160][st % 3] if B.DEEP else FR + (st & 1) * 32)
    def reads(st):
        if not B.COMP or B.NORD: return []
        sl = st % B.R; hi = sl >= 4; so = (sl & 3) * 16384; fb = FRS(st); ops = []
        for ks in range(4):
            for op in range(2):
                if B.HALF and op == 1: continue
                if B.B128 >= 2 - op:
                    ops.append(lambda ks=ks, op=op: a.e('ds_read_b128 %s, v%d offset:%d' % (vr(fb + ks * 8 + op * 4, 4), 13 + hi, so + op * 8192 + ks * 2048), 'r%d' % st))
                    continue
                for t in range(2):
                    ops.append(lambda ks=ks, op=op, t=t: a.e('ds_read_b64_tr_b16 %s, v%d offset:%d' % (vr(fb + ks * 8 + op * 4 + 2 * t, 2), (8, 10)[op] + hi, so + op * 8192 + ks * 2048 + t * 512), 'r%d' % st))
        return ops
    def mfmas(st):
        fb = FRS(st)
        if not B.COMP or B.NOMF: return [lambda: a.e('s_nop 0')]
        if B.M16:
            return [lambda k2=k2, i=i, j=j: a.e('v_mfma_f32_16x16x32_bf16 %s, %s, %s, %s' % (vr(16 + 4 * (2 * i + j), 4), vr(fb + k2 * 16 + i * 8, 4), vr(fb + k2 * 16 + j * 8 + 4, 4), vr(16 + 4 * (2 * i + j), 4))) for k2 in range(2) for i in range(2) for j in range(2)]
        return [lambda ks=ks: a.e('v_mfma_f32_32x32x16_bf16 %s, %s, %s, %s' % (vr([16, 32, 128, 144][ks % B.NACC], 16), vr(fb + ks * 8, 4), vr(fb + ks * 8 + 4, 4), vr([16, 32, 128, 144][ks % B.NACC], 16))) for ks in range(4)]
    gen2.P.FRONT = B.FRONT
    if not B.NL:
        for st in range(B.LA):
            for f in dma(st): f()
        a.wait(vm='st0')
    a.e('s_barrier'); a.e('s_memrealtime s[82:83]'); a.e('s_memtime s[88:89]')
    for f in reads(0): f()
    if not B.NL:
        for f in dma(B.LA): f()
    D = 1 + B.DEEP
    if B.DEEP:
        a.e('s_barrier')
        for f in reads(1): f()
    for i in range(B.NS):
        a.wait(vm=('st%d' % (i + 1) if (not B.NL and i + 1 < B.NS) else None), lg=('r%d' % i if B.DEEP else 'all'))
        if i + D < B.NS: a.e('s_barrier')
        rd = reads(i + D) if i + D < B.NS else []
        dm = dma(i + 1 + B.LA) if (not B.NL and i + 1 + B.LA < B.NS) else []
        m = mfmas(i)
        va = [(lambda j=j: a.e(('v_exp_f32 v%d, v%d' if j % B.EXPF == 0 else 'v_mul_f32 v%d, v112, v%d') % (113 + j % 12, 113 + j % 12))) for j in range(B.NV)]
        def mix(x, y):
            out = []; k = 0
            for j, r in enumerate(x):
                out.append(r)
                while k < (len(y) * (j + 1)) // len(x): out.append(y[k]); k += 1
            return out + y[k:]
        hh = len(m) // 2
        if B.VM == 0: gen2.spread(m[:hh] or m, rd); gen2.spread(m[hh:] if hh else [lambda: None], va + dm)
        if B.VM == 1: gen2.spread(m, mix(rd, va) if rd else va)
        if B.VM == 2:
            q = (3 * len(m)) // 4; nv = (3 * len(va)) // 4
            gen2.spread(m[:q], mix(rd, va[:nv]) if rd else va[:nv]); gen2.spread(m[q:], va[nv:])
        if B.VM == 3:
            nv = len(va) // 2
            gen2.spread(m[:hh], mix(rd, va[:nv]) if rd else va[:nv]); gen2.spread(m[hh:], va[nv:])
        if B.VM == 4:
            for r in rd: r()
            gen2.spread(m, va)
    a.e('s_nop 15'); a.e('s_memrealtime s[84:85]'); a.e('s_memtime s[86:87]'); a.e('s_waitcnt lgkmcnt(0)'); a.e('s_sub_u32 s86, s86, s88'); a.e('s_mov_b32 s87, 0')
    a.e('s_cmp_lg_u32 s3, 0'); a.e('s_cbranch_scc1 fin')
    for j in range(8): a.e('v_mov_b32 v%d, s%d' % (32 + j, 80 + j))
    a.e('s_lshl_b32 s79, s2, 5'); a.e('s_add_u32 s79, s79, 0x%x' % TSOFF); a.e('v_mov_b32 v2, s79'); a.e('s_mov_b64 exec, 1')
    a.e('global_store_dwordx4 v2, v[32:35], s[38:39]'); a.e('global_store_dwordx4 v2, v[36:39], s[38:39] offset:16')
    a.label('fin'); a.e('s_endpgm')
    if B.NL:
        a.label('loader'); a.reset()
        if B.PRIO: a.e('s_setprio %d' % B.PRIO)
        for st in range(B.LA):
            for f in dma(st): f()
        for i in range(B.NS):
            a.wait(vm='st%d' % i); a.e('s_barrier')
            if i + B.LA < B.NS:
                for f in dma(i + B.LA): f()
        a.e('s_endpgm')
    hdr = '; @launch grid=(256,1,1) block=(%d,1,1) lds=131072\n' % (256 + 64 * B.NL)
    s = hdr + '.amdgcn_target "amdgcn-amd-amdhsa--gfx950"\n.text\n' + a.text()
    s += '''.section .rodata,"a"
.p2align 6
.amdhsa_kernel %s
  .amdhsa_next_free_vgpr 192
  .amdhsa_next_free_sgpr 102
  .amdhsa_accum_offset 192
  .amdhsa_group_segment_fixed_size 0
  .amdhsa_kernarg_size 96
  .amdhsa_user_sgpr_count 2
  .amdhsa_user_sgpr_kernarg_segment_ptr 1
  .amdhsa_system_sgpr_workgroup_id_x 1
.end_amdhsa_kernel
''' % kn
    open(out, 'w').write(s)
if __name__ == '__main__':
    out = sys.argv[1]
    for arg in sys.argv[2:]:
        k, v = arg.split('='); setattr(B, k, int(v))
    gen(out)
```
